```python
import torch

def _softmax(x, axis=-1):
    return torch.softmax(x, dim=axis)
def _gelu(x):
    return torch.nn.functional.gelu(x, approximate="tanh")
def _silu(x):
    return torch.nn.functional.silu(x)
def _sigmoid(x):
    return torch.sigmoid(x)
def _layernorm(x, axis=-1, eps=1e-5):
    m = x.mean(dim=axis, keepdim=True)
    v = x.var(dim=axis, keepdim=True, unbiased=False)
    return (x - m) / torch.sqrt(v + eps)
def _scatter_add(tgt, idx, src, axis=0):
    return tgt.clone().index_add_(axis, idx, src)
def _segment_sum(src, seg, n):
    out = torch.zeros((n,) + src.shape[1:], dtype=src.dtype)
    return out.index_add_(0, seg, src)
def _pad(x, pw):
    flat = tuple(v for pair in reversed(pw) for v in pair)
    return torch.nn.functional.pad(x, flat)

kernel_name = 'parallel_sum__mha_block__glu_gated_reglu__prompt'

def setup_inputs():

    _w = (lambda a: (lambda t: t.to(torch.bfloat16) if t.is_floating_point() else t)(torch.as_tensor(a)))
    def _A_setup():
        B, S, D, H = 1, 2048, 512, 32
        return {
            "x": _w((lambda *s: torch.randn(*s, dtype=torch.bfloat16) * 0.05)(B, S, D)),
            "wqkv": _w((lambda *s: torch.randn(*s, dtype=torch.bfloat16) * 0.05)(D, 3 * D)),
            "wo": _w((lambda *s: torch.randn(*s, dtype=torch.bfloat16) * 0.05)(D, D)),
        }
    _A_in = _A_setup()

    def _B_setup():
        B, S, D, F = 1, 2048, 512, 1792
        return {
            "x": _w((lambda *s: torch.randn(*s, dtype=torch.bfloat16) * 0.05)(B, S, D)),
            "W_gate": _w((lambda *s: torch.randn(*s, dtype=torch.bfloat16) * 0.4)(D, F) * (2.0 / D) ** 0.5),
            "W_up": _w((lambda *s: torch.randn(*s, dtype=torch.bfloat16) * 0.4)(D, F) * (2.0 / D) ** 0.5),
            "W_down": _w((lambda *s: torch.randn(*s, dtype=torch.bfloat16) * 0.4)(F, D) * (1.0 / F) ** 0.5),
        }
    _B_in = _B_setup()

    return {
        "A_x": _A_in["x"],
        "A_wqkv": _A_in["wqkv"],
        "A_wo": _A_in["wo"],
        "B_x": _B_in["x"],
        "B_W_gate": _B_in["W_gate"],
        "B_W_up": _B_in["W_up"],
        "B_W_down": _B_in["W_down"],
    }

def reference(A_x, A_wqkv, A_wo, B_x, B_W_gate, B_W_up, B_W_down):
    def _A_ref(x, wqkv, wo):
        B, S, D = x.shape
        H = 32
        Dh = D // H
        qkv = (lambda x, *d: x.permute(*d))((x @ wqkv).reshape(B, S, 3, H, Dh), 2, 0, 3, 1, 4)
        q, k, v = qkv[0], qkv[1], qkv[2]
        scores = torch.einsum("bhqd,bhkd->bhqk", q, k) * (Dh ** -0.5)
        p = _softmax(scores, axis=-1)
        o = torch.einsum("bhqk,bhkd->bhqd", p, v)
        return (lambda x, *d: x.permute(*d))(o, 0, 2, 1, 3).reshape(B, S, D) @ wo

    def _B_ref(x, W_gate, W_up, W_down):
        gate = torch.einsum("bsd,df->bsf", x, W_gate)
        up = torch.einsum("bsd,df->bsf", x, W_up)
        gate = gate * (lambda x, dt: x.to(dt))(gate > 0, gate.dtype)
        h = gate * up
        return torch.einsum("bsf,fd->bsd", h, W_down)

    x = A_x
    xn = _layernorm(x, axis=-1)
    return x + _A_ref(xn, A_wqkv, A_wo) + _B_ref(xn, B_W_gate, B_W_up, B_W_down)
```

```python
NAME = "parallel_sum__mha_block__glu_gated_reglu__prompt"

XNF = 0x0
QF  = 0x200000
KF  = 0x400000
VF  = 0x600000
ACT = 0x800000
GU  = 0x1100000
W2  = 0x1480000
TS = 0x16C0000
WS_END = 0x1800000

class A:
    def __init__(self):
        self.l = []
    def __call__(self, s):
        for line in s.strip("\n").split("\n"):
            self.l.append(line if line.rstrip().endswith(":") or line.startswith(".") else "    " + line.strip())
    def text(self):
        return "\n".join(self.l) + "\n"

def vr(b, n=4):
    return f"v[{b}:{b+n-1}]" if n > 1 else f"v{b}"
def sr(b, n=4):
    return f"s[{b}:{b+n-1}]" if n > 1 else f"s{b}"

def mfma(d, a, b, c=None):
    cs = vr(d, 16) if c is None else (c if isinstance(c, str) else vr(c, 16))
    return f"v_mfma_f32_32x32x16_bf16 {vr(d,16)}, {vr(a)}, {vr(b)}, {cs}"

def srd(a, dst, base, nbytes):
    a(f"""
s_mov_b32 s{dst}, s{base}
s_mov_b32 s{dst+1}, s{base+1}
s_mov_b32 s{dst+2}, {hex(nbytes)}
s_mov_b32 s{dst+3}, 0x00020000
""")

def kernel_head(a, name):
    a(f".globl {name}\n.p2align 8\n.type {name},@function\n{name}:")

def descriptor(name, vgpr, sgpr=100):
    acc = (vgpr + 3)//4*4
    return f""".p2align 6
.amdhsa_kernel {name}
  .amdhsa_next_free_vgpr {vgpr}
  .amdhsa_next_free_sgpr {sgpr}
  .amdhsa_accum_offset {acc}
  .amdhsa_group_segment_fixed_size 0
  .amdhsa_kernarg_size 80
  .amdhsa_user_sgpr_count 2
  .amdhsa_user_sgpr_kernarg_segment_ptr 1
  .amdhsa_system_sgpr_workgroup_id_x 1
.end_amdhsa_kernel
"""

PROF = {"on": False}
def stamp(a, i):
    if PROF["on"]:
        a(f"s_memtime s[{80+2*i}:{81+2*i}]")
def stamp_start(a):
    if PROF["on"]:
        a("s_memrealtime s[92:93]\ns_memtime s[80:81]")
        for i in range(1, 6): a(f"s_mov_b32 s{80+2*i}, 0")
def stamp_end(a, kidx, wave_sgpr=3, nw=16):
    if PROF["on"]:
        a(f"""
s_waitcnt vmcnt(0)
s_memtime s[90:91]
s_memrealtime s[94:95]
s_mov_b64 exec, 1
s_waitcnt lgkmcnt(0)
v_mov_b32 v0, s92
v_mov_b32 v1, s94
v_mov_b32 v2, s80
v_mov_b32 v3, s82
v_mov_b32 v4, s84
v_mov_b32 v5, s86
v_mov_b32 v6, s88
v_mov_b32 v7, s90
s_lshl_b32 s78, s2, 4
s_add_u32 s78, s78, s{wave_sgpr}
s_lshl_b32 s78, s78, 5
s_add_u32 s78, s78, {TS + kidx*256*16*32}
v_mov_b32 v8, 0
buffer_store_dwordx4 v[0:3], v8, s[16:19], s78 offen
buffer_store_dwordx4 v[4:7], v8, s[16:19], s78 offen offset:16
""")
```

```python
from common import *

K1_LDS = 157696
WRING = 0
XN = 73728
SCR = 141312

def gen_k1(a, name="k1_kernel"):
    kernel_head(a, name)
    X = 8
    F = 40
    WR = 104
    ACC = 104
    FR = 152
    XA = 200
    WA0, WA1 = 208, 209
    vLane, vXo, vWo, vLw, vT0, vT1, vT2 = 1, 2, 3, 4, 5, 6, 7
    vS, vQ, vS2, vQ2 = 224, 225, 226, 227
    vM, vR = 228, 229
    vWo2, vHw = 230, 231
    a(f"""
s_cmp_ge_u32 s2, 256
s_cbranch_scc1 L_k1_exit
""")
    stamp_start(a)
    a(f"""
s_load_dwordx4 s[36:39], s[0:1], 0
s_load_dwordx2 s[40:41], s[0:1], 16
s_load_dwordx4 s[44:47], s[0:1], 32
s_load_dwordx2 s[48:49], s[0:1], 48
s_load_dwordx2 s[50:51], s[0:1], 72
v_lshrrev_b32 v{vT0}, 6, v0
v_and_b32 v{vLane}, 63, v0
v_readfirstlane_b32 s3, v{vT0}
s_and_b32 s4, s2, 7
s_lshr_b32 s5, s2, 3
s_and_b32 s6, s5, 7
v_lshrrev_b32 v{vT0}, 3, v0
v_and_b32 v{vT1}, 7, v0
s_lshl_b32 s7, s5, 16
v_lshlrev_b32 v{vXo}, 10, v{vT0}
v_lshl_add_u32 v{vXo}, v{vT1}, 4, v{vXo}
v_lshrrev_b32 v{vT2}, 2, v0
v_and_b32 v{vT2}, 4, v{vT2}
v_xor_b32 v{vT2}, v{vT2}, v{vT1}
v_mul_u32_u24 v{vWo}, 3072, v{vT0}
v_lshl_add_u32 v{vWo}, v{vT2}, 4, v{vWo}
s_lshl_b32 s52, s4, 7
v_add_u32 v{vWo}, s52, v{vWo}
s_mul_i32 s53, s3, 3072
s_waitcnt lgkmcnt(0)
""")
    srd(a, 8, 36, 0x200000)
    for i in range(8):
        a(f"buffer_load_dwordx4 {vr(X+4*i)}, v{vXo}, s[8:11], s7 offen offset:{128*i}")
    srd(a, 12, 38, 512*3072)
    for st in range(3):
        a(f"""
s_add_u32 s54, s6, {st}
s_and_b32 s54, s54, 7
s_mul_i32 s54, s54, {64*3072}
s_add_u32 m0, s53, {WRING + st*24576}
s_nop 0
buffer_load_dwordx4 v{vWo}, s[12:15], s54 offen lds
buffer_load_dwordx4 v{vWo}, s[12:15], s54 offen offset:1024 lds
buffer_load_dwordx4 v{vWo}, s[12:15], s54 offen offset:2048 lds
""")
    srd(a, 16, 50, WS_END)
    a(f"""
v_lshrrev_b32 v{vT2}, 5, v{vT0}
v_mul_u32_u24 v{vLw}, 33792, v{vT2}
v_and_b32 v{vT2}, 31, v{vT0}
v_lshl_add_u32 v{vLw}, v{vT2}, 4, v{vLw}
v_mul_u32_u24 v{vT2}, 528, v{vT1}
v_add_u32 v{vLw}, v{vT2}, v{vLw}
v_add_u32 v{vLw}, {XN}, v{vLw}
v_mov_b32 v{vS}, 0
v_mov_b32 v{vQ}, 0
v_mov_b32 v{vS2}, 0
v_mov_b32 v{vQ2}, 0
s_mov_b32 s55, 0x3f803f80
s_mov_b32 s56, 0xffff0000
""")
    a(f"""
s_sub_u32 s57, s3, 4
s_mul_i32 s58, s57, {8*3072}
s_sub_u32 s58, s58, {32*3072}
v_add_u32 v{vWo2}, s58, v{vWo}
s_mul_i32 s58, s57, 6144
v_lshlrev_b32 v{vHw}, 4, v{vLane}
v_add_u32 v{vHw}, s58, v{vHw}
""")
    a(f"""
s_and_b32 s58, s3, 1
s_mul_i32 s58, s58, 33792
s_add_u32 s58, s58, {XN}
v_lshrrev_b32 v{vT2}, 5, v{vLane}
v_mul_u32_u24 v{vT0}, 528, v{vT2}
v_and_b32 v{vT1}, 31, v{vLane}
v_lshl_add_u32 v{vT0}, v{vT1}, 4, v{vT0}
""")
    for st in range(8):
        a(f"""
s_add_u32 s59, s6, {st}
s_and_b32 s59, s59, 7
s_mul_i32 s59, s59, 4224
s_add_u32 s59, s59, s58
v_add_u32 v{XA+st}, s59, v{vT0}
""")
    a(f"""
v_mul_u32_u24 v{WA0}, 3072, v{vT2}
v_bfe_u32 v{vT0}, v{vLane}, 2, 2
v_lshl_add_u32 v{WA0}, v{vT0}, 7, v{WA0}
v_bfe_u32 v{vT0}, v{vLane}, 3, 1
s_lshr_b32 s59, s3, 1
s_and_b32 s59, s59, 1
v_xor_b32 v{vT0}, s59, v{vT0}
v_lshl_add_u32 v{WA0}, v{vT0}, 6, v{WA0}
v_bfe_u32 v{vT0}, v{vLane}, 4, 1
v_lshl_add_u32 v{WA0}, v{vT0}, 5, v{WA0}
v_and_b32 v{vT0}, 3, v{vLane}
v_lshl_add_u32 v{WA0}, v{vT0}, 3, v{WA0}
v_add_u32 v{WA1}, {2*24576}, v{WA0}
""")
    for i in range(8):
        a(f"s_waitcnt vmcnt({16-i})")
        for r in range(4):
            x = X+4*i+r
            a(f"v_dot2c_f32_bf16 v{vS if r%2==0 else vS2}, s55, v{x}")
            a(f"v_dot2c_f32_bf16 v{vQ if r%2==0 else vQ2}, v{x}, v{x}")
            a(f"v_lshlrev_b32 v{F+8*i+2*r}, 16, v{x}")
            a(f"v_and_b32 v{F+8*i+2*r+1}, s56, v{x}")
    stamp(a, 1)
    a("s_cmp_lt_u32 s3, 4\ns_cbranch_scc1 L_k1_noload")
    for m in range(5):
        a(f"""
s_add_u32 s54, s6, {3+m}
s_and_b32 s54, s54, 7
s_mul_i32 s54, s54, {64*3072}
s_add_u32 s59, s54, 24576
""")
        for bb in range(2):
            for seg in range(3):
                r = WR + (m*6 + bb*3 + seg)*4
                a(f"buffer_load_dwordx4 {vr(r)}, v{vWo2}, s[12:15], s{54 if bb==0 else 59} offen offset:{seg*1024}")
    a("L_k1_noload:")
    a(f"""
s_nop 1
v_add_f32 v{vS}, v{vS}, v{vS2}
v_add_f32 v{vQ}, v{vQ}, v{vQ2}
s_nop 1
v_add_f32_dpp v{vS}, v{vS}, v{vS} quad_perm:[1,0,3,2] row_mask:0xf bank_mask:0xf
v_add_f32_dpp v{vQ}, v{vQ}, v{vQ} quad_perm:[1,0,3,2] row_mask:0xf bank_mask:0xf
s_nop 1
v_add_f32_dpp v{vS}, v{vS}, v{vS} quad_perm:[2,3,0,1] row_mask:0xf bank_mask:0xf
v_add_f32_dpp v{vQ}, v{vQ}, v{vQ} quad_perm:[2,3,0,1] row_mask:0xf bank_mask:0xf
s_nop 1
v_add_f32_dpp v{vS}, v{vS}, v{vS} row_half_mirror row_mask:0xf bank_mask:0xf
v_add_f32_dpp v{vQ}, v{vQ}, v{vQ} row_half_mirror row_mask:0xf bank_mask:0xf
v_mul_f32 v{vS}, 0x3b000000, v{vS}
v_mul_f32 v{vQ}, 0x3b000000, v{vQ}
v_fma_f32 v{vQ}, -v{vS}, v{vS}, v{vQ}
v_max_f32 v{vQ}, 0, v{vQ}
v_cvt_pk_bf16_f32 v{vM}, v{vS}, v{vQ}
v_and_b32 v{vQ}, s56, v{vM}
v_lshlrev_b32 v{vM}, 16, v{vM}
v_add_f32 v{vQ}, 0x3727c5ac, v{vQ}
v_cvt_pk_bf16_f32 v{vQ}, v{vQ}, v{vQ}
v_and_b32 v{vQ}, s56, v{vQ}
v_sqrt_f32 v{vQ}, v{vQ}
s_nop 0
v_cvt_pk_bf16_f32 v{vQ}, v{vQ}, v{vQ}
v_and_b32 v{vQ}, s56, v{vQ}
v_rcp_f32 v{vR}, v{vQ}
s_nop 0
v_mul_f32 v{vM}, v{vM}, v{vR}
""")
    for i in range(8):
        for r in range(8):
            f = F+8*i+r
            a(f"v_fma_f32 v{f}, v{f}, v{vR}, -v{vM}")
        for r in range(4):
            a(f"v_cvt_pk_bf16_f32 v{X+4*i+r}, v{F+8*i+2*r}, v{F+8*i+2*r+1}")
        a(f"ds_write_b128 v{vLw}, {vr(X+4*i)} offset:{4224*i}")
    a("s_cmp_ge_u32 s3, 4\ns_cbranch_scc1 L_k1_helper")
    stamp(a, 2)
    a("s_waitcnt vmcnt(0) lgkmcnt(0)\ns_barrier")
    stamp(a, 3)
    a("s_waitcnt lgkmcnt(0)") if PROF["on"] else None
    def reads(k, part):
        st, kk = k//4, k%4
        slot = st % 3
        base = FR + 16*(k%3)
        wa = WA1 if slot == 2 else WA0
        so = (0 if slot == 2 else slot*24576) + kk*6144
        out = []
        if part == 0:
            out.append(f"ds_read_b128 {vr(base)}, v{XA+st} offset:{kk*1056}")
        seg = part
        for e in range(2):
            out.append(f"ds_read_b64_tr_b16 {vr(base+4+4*seg+2*e,2)}, v{wa} offset:{so+seg*1024+e*512}")
        return "\n".join(out)
    for k in (0, 1):
        for p in range(3): a(reads(k, p))
    for k in range(32):
        base = FR + 16*(k%3)
        c = "0" if k == 0 else None
        nxt = k+2 < 32
        rem1 = 7 if k+1 < 32 else 0
        a(f"s_waitcnt lgkmcnt({4+rem1})")
        a(mfma(ACC, base+4, base, c))
        if nxt: a(reads(k+2, 0))
        a(f"s_waitcnt lgkmcnt({2+rem1+(3 if nxt else 0)})")
        a(mfma(ACC+16, base+8, base, c))
        if nxt: a(reads(k+2, 1))
        a(f"s_waitcnt lgkmcnt({rem1+(5 if nxt else 0)})")
        a(mfma(ACC+32, base, base+12, c))
        if nxt: a(reads(k+2, 2))
        if k % 4 == 3 and k//4 <= 5:
            a("s_barrier")
    stamp(a, 4)
    a(f"""
s_lshr_b32 s59, s3, 1
s_lshl_b32 s59, s59, 1
s_lshl_b32 s60, s4, 2
s_add_u32 s60, s60, s59
s_lshl_b32 s60, s60, 6
s_lshl_b32 s59, s5, 1
s_add_u32 s60, s60, s59
s_and_b32 s59, s3, 1
s_add_u32 s60, s60, s59
s_lshl_b32 s60, s60, 10
s_add_u32 s61, s60, {QF}
s_add_u32 s62, s60, {QF+65536}
s_add_u32 s63, s60, {KF}
s_add_u32 s64, s60, {KF+65536}
s_add_u32 s65, s60, {VF}
s_mov_b32 s66, 0x3eb8aa3b
v_lshlrev_b32 v{vT0}, 4, v{vLane}
v_bfe_u32 v{vT1}, v{vLane}, 4, 1
v_lshlrev_b32 v{vT1}, 16, v{vT1}
v_lshrrev_b32 v{vT2}, 5, v{vLane}
v_lshl_add_u32 v{vT1}, v{vT2}, 8, v{vT1}
v_and_b32 v{vT2}, 15, v{vLane}
v_lshl_add_u32 v{vT1}, v{vT2}, 4, v{vT1}
""")
    for r in range(16):
        a(f"v_mul_f32 v{ACC+r}, s66, v{ACC+r}")
    for r in range(8):
        a(f"v_cvt_pk_bf16_f32 v{X+r}, v{ACC+2*r}, v{ACC+2*r+1}")
    a(f"buffer_store_dwordx4 {vr(X)}, v{vT0}, s[16:19], s61 offen")
    a(f"buffer_store_dwordx4 {vr(X+4)}, v{vT0}, s[16:19], s62 offen")
    for r in range(8):
        a(f"v_cvt_pk_bf16_f32 v{X+8+r}, v{ACC+16+2*r}, v{ACC+16+2*r+1}")
    a(f"buffer_store_dwordx4 {vr(X+8)}, v{vT0}, s[16:19], s63 offen")
    a(f"buffer_store_dwordx4 {vr(X+12)}, v{vT0}, s[16:19], s64 offen")
    for r in range(8):
        a(f"v_cvt_pk_bf16_f32 v{X+16+r}, v{ACC+32+2*r}, v{ACC+32+2*r+1}")
    a(f"buffer_store_dwordx4 {vr(X+16)}, v{vT1}, s[16:19], s65 offen")
    a(f"buffer_store_dwordx4 {vr(X+20)}, v{vT1}, s[16:19], s65 offen offset:512")
    a("s_branch L_k1_end" if PROF["on"] else "s_endpgm")
    a("L_k1_helper:")
    a("s_waitcnt vmcnt(30) lgkmcnt(0)\ns_barrier")
    U1, U2 = F, F+16
    T = F+32
    vA, vB, vC, vD = X+8, X+9, X+10, X+11
    a(f"""
s_lshl_b32 s58, s4, 2
s_add_u32 s58, s58, s57
s_mul_i32 s59, s58, 1056
s_add_u32 s59, s59, {XN}
v_lshrrev_b32 v{vT2}, 5, v{vLane}
v_mul_u32_u24 v{vT0}, 528, v{vT2}
v_and_b32 v{vT1}, 31, v{vLane}
v_lshl_add_u32 v{vT0}, v{vT1}, 4, v{vT0}
v_add_u32 v{vT0}, s59, v{vT0}
ds_read_b128 {vr(X)}, v{vT0}
ds_read_b128 {vr(X+4)}, v{vT0} offset:33792
s_lshl_b32 s59, s5, 6
s_add_u32 s59, s59, s58
s_lshl_b32 s59, s59, 10
s_add_u32 s60, s59, {XNF+32768}
s_add_u32 s59, s59, {XNF}
v_lshlrev_b32 v{vA}, 4, v{vLane}
s_waitcnt lgkmcnt(0)
buffer_store_dwordx4 {vr(X)}, v{vA}, s[16:19], s59 offen
buffer_store_dwordx4 {vr(X+4)}, v{vA}, s[16:19], s60 offen
""")
    srd(a, 20, 44, 512*3584)
    srd(a, 24, 46, 512*3584)
    a(f"""
s_lshl_b32 s68, s2, 2
s_add_u32 s68, s68, s57
s_lshl_b32 s69, s2, 1
s_add_u32 s69, s69, s57
s_add_u32 s69, s69, 1024
s_cmp_lt_u32 s57, 2
s_cselect_b32 s71, 1, 0
s_cmp_lt_u32 s69, 1472
s_cselect_b32 s71, s71, 0
s_cmp_eq_u32 s71, 1
s_cselect_b32 s69, s69, 1024
v_lshrrev_b32 v{vT0}, 4, v{vLane}
v_lshlrev_b32 v{vB}, 10, v{vT0}
v_and_b32 v{vT0}, 15, v{vLane}
v_lshl_add_u32 v{vB}, v{vT0}, 4, v{vB}
""")
    def w2_decode(su, sdst):
        a(f"""
s_sub_u32 s72, s{su}, 896
s_lshr_b32 s73, s72, 2
s_and_b32 s74, s72, 3
s_mul_i32 s{sdst}, s74, {4*144}
s_add_u32 s{sdst}, s{sdst}, s73
s_lshl_b32 s{sdst}, s{sdst}, 10
s_add_u32 s{sdst}, s{sdst}, {W2}
s_sub_u32 s75, s73, 112
s_cmp_lt_u32 s73, 112
s_cselect_b32 s28, s48, s40
s_cselect_b32 s29, s49, s41
s_mov_b32 s30, {hex(512*1024)}
s_cselect_b32 s30, {hex(1792*1024)}, s30
s_mov_b32 s31, 0x00020000
s_cselect_b32 s73, s73, s75
s_lshl_b32 s72, s73, 14
s_lshl_b32 s74, s74, 8
s_add_u32 s72, s72, s74
""")
    def w2_loads(U):
        for t in range(4):
            a(f"buffer_load_dwordx4 {vr(U+4*t)}, v{vB}, s[28:31], s72 offen")
            if t < 3: a("s_add_u32 s72, s72, 4096")
    a("s_cmp_ge_u32 s68, 896\ns_cbranch_scc1 L_k1_u1w2")
    a(f"""
s_mul_i32 s72, s68, 2341
s_lshr_b32 s72, s72, 16
s_mul_i32 s73, s72, 28
s_sub_u32 s73, s68, s73
s_lshl_b32 s76, s73, 7
s_add_u32 s76, s76, s72
s_lshl_b32 s76, s76, 10
s_add_u32 s76, s76, {GU}
s_mul_i32 s72, s72, {16*3584}
s_lshl_b32 s73, s73, 7
s_add_u32 s72, s72, s73
s_add_u32 s73, s72, {8*3584}
v_lshrrev_b32 v{vT0}, 3, v{vLane}
v_mul_u32_u24 v{vC}, 3584, v{vT0}
v_and_b32 v{vT0}, 7, v{vLane}
v_lshl_add_u32 v{vC}, v{vT0}, 4, v{vC}
buffer_load_dwordx4 {vr(U1)}, v{vC}, s[20:23], s72 offen
buffer_load_dwordx4 {vr(U1+4)}, v{vC}, s[20:23], s73 offen
buffer_load_dwordx4 {vr(U1+8)}, v{vC}, s[24:27], s72 offen
buffer_load_dwordx4 {vr(U1+12)}, v{vC}, s[24:27], s73 offen
s_branch L_k1_u1done
L_k1_u1w2:
""")
    w2_decode(68, 76)
    w2_loads(U1)
    a("L_k1_u1done:")
    w2_decode(69, 77)
    w2_loads(U2)
    for m in range(5):
        a("s_barrier")
        a(f"s_waitcnt vmcnt({10+(4-m)*6})")
        slot = m % 3
        for bb in range(2):
            for seg in range(3):
                r = WR + (m*6 + bb*3 + seg)*4
                a(f"ds_write_b128 v{vHw}, {vr(r)} offset:{WRING+slot*24576+bb*3072+seg*1024}")
        a("s_waitcnt lgkmcnt(0)")
    a("s_barrier")
    stamp(a, 4)
    a("s_waitcnt lgkmcnt(0)") if PROF["on"] else None
    a(f"""
s_lshl_b32 s58, s57, 12
s_add_u32 s58, s58, {SCR}
v_add_u32 v{vC}, s58, v{vA}
v_lshrrev_b32 v{vT0}, 5, v{vLane}
v_bfe_u32 v{vT1}, v{vLane}, 2, 2
v_bfe_u32 v{vT2}, v{vLane}, 4, 1
v_and_b32 v{vB}, 3, v{vLane}
v_lshlrev_b32 v{vB}, 3, v{vB}
v_add_u32 v{vB}, s58, v{vB}
v_lshl_add_u32 v{vD}, v{vT0}, 2, v{vT1}
v_lshl_add_u32 v{vD}, v{vD}, 8, v{vB}
v_lshl_add_u32 v{vD}, v{vT2}, 5, v{vD}
v_lshl_add_u32 v{vT0}, v{vT0}, 3, v{vT1}
v_lshl_add_u32 v{vB}, v{vT0}, 7, v{vB}
v_lshl_add_u32 v{vB}, v{vT2}, 11, v{vB}
""")
    def proc(U, addr, eoff, qoff, sdst, qstride):
        for t in range(4):
            a(f"ds_write_b128 v{vC}, {vr(U+4*t)} offset:{1024*t}")
        a("s_waitcnt lgkmcnt(0)")
        for q in range(4):
            for e in range(2):
                a(f"ds_read_b64_tr_b16 {vr(T+4*q+2*e,2)}, v{addr} offset:{e*eoff+q*qoff}")
        for q in range(4):
            a(f"s_waitcnt lgkmcnt({6-2*q})")
            a(f"buffer_store_dwordx4 {vr(T+4*q)}, v{vA}, s[16:19], s{sdst} offen")
            if q < 3: a(f"s_add_u32 s{sdst}, s{sdst}, {qstride}")
    a("s_waitcnt vmcnt(4)")
    a("s_cmp_ge_u32 s68, 896\ns_cbranch_scc1 L_k1_p1w2")
    proc(U1, vB, 512, 32, 76, 32768)
    a("s_branch L_k1_p1done\nL_k1_p1w2:")
    proc(U1, vD, 2048, 64, 76, 147456)
    a("L_k1_p1done:")
    a("s_cmp_eq_u32 s71, 0\ns_cbranch_scc1 L_k1_end")
    T = F+48
    a("s_waitcnt vmcnt(4)")
    proc(U2, vD, 2048, 64, 77, 147456)
    a("L_k1_end:")
    stamp_end(a, 0)
    a("L_k1_exit:\ns_endpgm")
```

```python
from common import *

K2_LDS = 131072 + 64
FLAG = 131072

def att_phase(a, n, R, loads=None, wait=None):
    S = R['S']; P = R['P']; O = R['O']; Q = R['Q']; KV = R['KV']; T = R['T']
    Sc, Sn = S[n % 2], S[(n+1) % 2]
    Pc, Pp = P[n % 2], P[(n-1) % 2]
    kn = KV[((n+1)//8) % 2]
    vp = KV[((n-1)//8) % 2]
    qn = (n+1) % 8
    qp = (n-1) % 8
    if wait: a(wait)
    a(mfma(Sn, kn, Q+4*qn, R.get('C', "0")))
    a(f"v_cvt_pk_bf16_f32 v{Pp+7}, v{T}, v{T+1}")
    for i in range(8):
        d0, d1 = (Sc+2*i, Sc+2*i+1) if i < 7 else (T, T+1)
        a(f"v_exp_f32 v{d0}, v{Sc+2*i}")
        a(f"v_exp_f32 v{d1}, v{Sc+2*i+1}")
        if i >= 1: a(f"v_cvt_pk_bf16_f32 v{Pc+i-1}, v{Sc+2*i-2}, v{Sc+2*i-1}")
        if i == 2: a(mfma(O+16*qp, vp+4, Pp))
        if i == 5: a(mfma(O+16*qp, vp+8, Pp+4))
        if i == 6 and loads: a(loads)

def gen_k2(a, name="k2_kernel", pace=1, noatt=0, nogemm=0, zpad=0):
    kernel_head(a, name)
    vLane, vT0, vT1, vT2, vL16, vVo, vFl = 1, 2, 3, 4, 5, 6, 7
    a(f"""
s_cmp_ge_u32 s2, 256
s_cbranch_scc1 L_k2_exit
""")
    stamp_start(a)
    a(f"""
s_load_dwordx2 s[50:51], s[0:1], 72
v_lshrrev_b32 v{vT0}, 6, v0
v_and_b32 v{vLane}, 63, v0
v_readfirstlane_b32 s3, v{vT0}
v_mov_b32 v{vFl}, {FLAG}
v_mov_b32 v{vT0}, 0
v_mov_b32 v{vT1}, 0
ds_write_b64 v{vFl}, v[{vT0}:{vT1}]
v_lshlrev_b32 v{vL16}, 4, v{vLane}
s_and_b32 s4, s2, 7
s_lshr_b32 s5, s2, 3
s_and_b32 s6, s5, 3
s_lshl_b32 s7, s4, 2
s_add_u32 s6, s6, s7
s_lshr_b32 s7, s5, 2           ; qb = i>>2
s_waitcnt lgkmcnt(0)
s_barrier
""")
    srd(a, 16, 50, WS_END)
    a("s_cmp_ge_u32 s3, 4\ns_cbranch_scc1 L_k2_gemm")
    R = dict(O=128, Q=96, S=(64, 80), P=(48, 56), KV=(24, 36), T=8)
    a(f"""
s_lshl_b32 s20, s6, 6
s_lshl_b32 s21, s3, 4
s_add_u32 s21, s21, s20
s_lshl_b32 s21, s21, 10
s_add_u32 s22, s21, {VF}       ; V soffset
s_add_u32 s21, s21, {KF}       ; K soffset
s_lshl_b32 s23, s7, 3
s_add_u32 s23, s23, s20
s_lshl_b32 s23, s23, 10
s_add_u32 s23, s23, {QF}       ; Q soffset
s_add_u32 s24, s23, 4096
s_mov_b32 s26, 0x0000ffff
s_mov_b32 s27, 0x0000ffff
buffer_load_dwordx4 {vr(R['KV'][0])}, v{vL16}, s[16:19], s21 offen
""")
    for q in range(8):
        a(f"buffer_load_dwordx4 {vr(R['Q']+4*q)}, v{vL16}, s[16:19], s{23 if q<4 else 24} offen offset:{1024*(q%4)}")
    a(f"""
v_lshrrev_b32 v{vT0}, 5, v{vLane}
v_lshlrev_b32 v{vVo}, 8, v{vT0}
v_and_b32 v{vT0}, 15, v{vLane}
v_lshl_add_u32 v{vVo}, v{vT0}, 4, v{vVo}
""")
    a(f"v_mov_b32 v{vT1}, 0x3f803f80")
    if zpad:
        a(f"""
v_and_b32 v{vT0}, 27, v{vLane}
v_cmp_eq_u32 vcc, 16, v{vT0}
s_nop 1
v_cndmask_b32 v{vT1}, 0, v{vT1}, vcc
""")
    for s in range(2):
        for r in range(8):
            a(f"v_mov_b32 v{R['KV'][s]+4+r}, v{vT1}")
    a(f"""
s_mov_b64 exec, s[26:27]
buffer_load_dwordx4 {vr(R['KV'][0]+4)}, v{vVo}, s[16:19], s22 offen
buffer_load_dwordx4 {vr(R['KV'][0]+8)}, v{vVo}, s[16:19], s22 offen offset:512
s_mov_b64 exec, -1
""")
    for r in range(128):
        a(f"v_mov_b32 v{R['O']+r}, 0")
    for r in range(8):
        a(f"v_mov_b32 v{R['P'][1]+r}, 0")
    a(f"v_mov_b32 v{R['T']}, 0\nv_mov_b32 v{R['T']+1}, 0")
    a(f"s_mov_b32 s28, {1 if noatt else 8}")
    a("s_waitcnt vmcnt(0)")
    a(mfma(R['S'][0], R['KV'][0], R['Q'], "0"))
    stamp(a, 1)
    a("s_nop 7\ns_nop 3")
    a(".p2align 6\nL_k2_att:")
    def kvloads(s):
        kv = R['KV'][s]
        return f"""
s_add_u32 s21, s21, 1024
s_add_u32 s22, s22, 1024
buffer_load_dwordx4 {vr(kv)}, v{vL16}, s[16:19], s21 offen
s_mov_b64 exec, s[26:27]
buffer_load_dwordx4 {vr(kv+4)}, v{vVo}, s[16:19], s22 offen
buffer_load_dwordx4 {vr(kv+8)}, v{vVo}, s[16:19], s22 offen offset:512
s_mov_b64 exec, -1
"""
    for n in range(16):
        att_phase(a, n, R, loads=kvloads(((n//8)+1) % 2) if n % 8 == 0 else None,
                  wait="s_waitcnt vmcnt(0)" if n % 8 == 7 else None)
    a("s_sub_u32 s28, s28, 1\ns_cmp_lg_u32 s28, 0\ns_cbranch_scc1 L_k2_att")
    stamp(a, 2)
    a(f"v_cvt_pk_bf16_f32 v{R['P'][1]+7}, v{R['T']}, v{R['T']+1}")
    a("s_nop 0")
    a(mfma(R['O']+112, R['KV'][1]+4, R['P'][1]))
    a(mfma(R['O']+112, R['KV'][1]+8, R['P'][1]+4))
    a(f"""
s_mul_i32 s29, s3, 2304
v_add_u32 v{vT0}, s29, v{vL16}
v_lshlrev_b32 v{vT1}, 2, v{vLane}
v_add_u32 v{vT1}, s29, v{vT1}
s_barrier
""")
    for q in range(8):
        o = R['O']+16*q
        off = q*9216
        if q == 7:
            a(f"v_add_u32 v{vT0}, {off}, v{vT0}\nv_add_u32 v{vT1}, {off}, v{vT1}")
            off = 0
        a(f"ds_write_b128 v{vT0}, {vr(o)} offset:{off}")
        a(f"ds_write_b128 v{vT0}, {vr(o+4)} offset:{off+1024}")
        a(f"ds_write_b32 v{vT1}, v{o+8} offset:{off+2048}")
    a("s_branch L_k2_fin")
    a("L_k2_gemm:")
    if nogemm: a("s_branch L_k2_gdone")
    ACC, WF, XF = 128, 96, 88
    vXa = 8
    a(f"""
s_setprio 1
s_sub_u32 s30, s3, 4            ; w'
s_and_b32 s31, s4, 1
s_lshl_b32 s31, s31, 3
s_and_b32 s32, s5, 7
s_add_u32 s31, s31, s32
s_lshr_b32 s32, s4, 1
s_lshl_b32 s32, s32, 2
s_lshr_b32 s33, s5, 3
s_add_u32 s32, s32, s33         ; fc
s_mul_i32 s33, s32, 7
s_lshl_b32 s34, s30, 1
s_add_u32 s33, s33, s34         ; ft0
s_lshl_b32 s34, s33, 15
s_add_u32 s34, s34, {GU}        ; W soffset f=0
s_cmp_eq_u32 s30, 3
s_cselect_b32 s35, 0, 32768
s_add_u32 s35, s35, s34         ; W soffset f=1
""")
    for kk in range(4):
        a(f"buffer_load_dwordx4 {vr(WF+8*kk)}, v{vL16}, s[16:19], s34 offen offset:{1024*kk}")
        a(f"buffer_load_dwordx4 {vr(WF+8*kk+4)}, v{vL16}, s[16:19], s35 offen offset:{1024*kk}")
    a(f"""
s_lshl_b32 s36, s31, 2
s_add_u32 s36, s36, s30
s_lshl_b32 s36, s36, 15
s_add_u32 s36, s36, {XNF}
s_lshl_b32 s37, s30, 12
""")
    for c in range(8):
        a(f"s_add_u32 m0, s37, {c*16384}\ns_nop 0")
        for kk in range(4):
            a(f"buffer_load_dwordx4 v{vL16}, s[16:19], s36 offen offset:{1024*kk} lds")
        if c < 7: a("s_add_u32 s36, s36, 4096")
    a(f"v_mov_b32 v{vXa}, v{vL16}\nv_mov_b32 v{vT0}, 1")
    def sync(idx, lbl):
        a(f"""
ds_add_u32 v{vFl}, v{vT0} offset:{4*idx}
{lbl}:
ds_read_b32 v{vT1}, v{vFl} offset:{4*idx}
s_waitcnt lgkmcnt(0)
v_readfirstlane_b32 s38, v{vT1}
s_cmp_lt_u32 s38, 256
s_cbranch_scc1 {lbl}
""")
    def body(first):
        a("s_add_u32 s34, s34, 4096\ns_add_u32 s35, s35, 4096")
        for kk in range(4):
            if not first: a("s_waitcnt vmcnt(6)")
            c = "0" if (first and kk == 0) else None
            if pace == 1:
                for tt in range(4):
                    for f in range(2):
                        xb = XF + 4*f
                        a(f"ds_read_b128 {vr(xb)}, v{vXa} offset:{tt*4096+kk*1024}")
                        a("s_waitcnt lgkmcnt(0)")
                        a(mfma(ACC+(f*4+tt)*16, WF+8*kk+4*f, xb, c))
            else:
                for tt in range(4):
                    xb = XF + 4*(tt % 2)
                    a(f"ds_read_b128 {vr(xb)}, v{vXa} offset:{tt*4096+kk*1024}")
                    a("s_waitcnt lgkmcnt(0)")
                    for f in range(2):
                        a(mfma(ACC+(f*4+tt)*16, WF+8*kk+4*f, xb, c))
            a(f"buffer_load_dwordx4 {vr(WF+8*kk)}, v{vL16}, s[16:19], s34 offen offset:{1024*kk}")
            a(f"buffer_load_dwordx4 {vr(WF+8*kk+4)}, v{vL16}, s[16:19], s35 offen offset:{1024*kk}")
        a(f"v_add_u32 v{vXa}, 16384, v{vXa}")
    a("s_waitcnt vmcnt(28)")
    sync(0, "L_k2_p0")
    stamp(a, 1)
    body(True)
    a("s_waitcnt vmcnt(8)")
    sync(1, "L_k2_p1")
    stamp(a, 2)
    a("s_mov_b32 s39, 7\n.p2align 6\nL_k2_gl:")
    body(False)
    a("s_sub_u32 s39, s39, 1\ns_cmp_lg_u32 s39, 0\ns_cbranch_scc1 L_k2_gl")
    stamp(a, 3)
    a(f"""
s_mul_i32 s40, s31, {4*144}
s_add_u32 s40, s40, s33
s_lshl_b32 s40, s40, 10
s_add_u32 s40, s40, {ACT}
s_nop 7
""")
    for f in range(2):
        if f == 1: a("s_cmp_eq_u32 s30, 3\ns_cbranch_scc1 L_k2_gdone")
        for tt in range(4):
            c = ACC+(f*4+tt)*16
            for r in range(8):
                a(f"v_max_f32 v{c+r}, 0, v{c+r}")
            for r in range(8):
                a(f"v_mul_f32 v{c+r}, v{c+r}, v{c+8+r}")
            for r in range(4):
                a(f"v_cvt_pk_bf16_f32 v{c+8+r}, v{c+2*r}, v{c+2*r+1}")
            a(f"s_add_u32 s41, s40, {tt*144*1024}")
            a(f"buffer_store_dwordx4 {vr(c+8)}, v{vL16}, s[16:19], s41 offen offset:{1024*f}")
    a("L_k2_gdone:\ns_setprio 0\ns_barrier")
    a("L_k2_fin:")
    B = 16
    a(f"""
s_waitcnt lgkmcnt(0)
s_barrier
""")
    stamp(a, 4)
    a("s_waitcnt lgkmcnt(0)") if PROF["on"] else None
    a(f"""
s_mul_i32 s29, s3, 9216
v_add_u32 v{vT0}, s29, v{vL16}
v_lshlrev_b32 v{vT1}, 2, v{vLane}
v_add_u32 v{vT1}, s29, v{vT1}
""")
    for w in range(4):
        a(f"ds_read_b128 {vr(B+12*w)}, v{vT0} offset:{w*2304}")
        a(f"ds_read_b128 {vr(B+12*w+4)}, v{vT0} offset:{w*2304+1024}")
        a(f"ds_read_b32 v{B+12*w+8}, v{vT1} offset:{w*2304+2048}")
    a(f"""
s_lshl_b32 s40, s7, 3
s_add_u32 s40, s40, s3
s_mul_i32 s40, s40, 144
s_add_u32 s40, s40, s6
s_add_u32 s40, s40, 112
s_lshl_b32 s40, s40, 10
s_add_u32 s40, s40, {ACT}
s_waitcnt lgkmcnt(6)
""")
    for r in range(9): a(f"v_add_f32 v{B+r}, v{B+r}, v{B+12+r}")
    a("s_waitcnt lgkmcnt(0)")
    for r in range(9): a(f"v_add_f32 v{B+24+r}, v{B+24+r}, v{B+36+r}")
    for r in (8,0,1,2,3,4,5,6,7): a(f"v_add_f32 v{B+r}, v{B+r}, v{B+24+r}")
    a(f"v_rcp_f32 v{B+9}, v{B+8}\ns_nop 0")
    for r in range(8): a(f"v_mul_f32 v{B+r}, v{B+r}, v{B+9}")
    for r in range(4): a(f"v_cvt_pk_bf16_f32 v{B+12+r}, v{B+2*r}, v{B+2*r+1}")
    a(f"buffer_store_dwordx4 {vr(B+12)}, v{vL16}, s[16:19], s40 offen")
    stamp_end(a, 1)
    a("L_k2_exit:\ns_endpgm")
```

```python
from common import *

K3_LDS = 8*17408

def gen_k3(a, name="k3_kernel"):
    kernel_head(a, name)
    vLane, vT0, vT1, vT2, vL16, vXo = 1, 2, 3, 4, 5, 6
    ACC = 192
    FR = 16
    XR = 8
    PD = 9
    a(f"""
s_cmp_ge_u32 s2, 256
s_cbranch_scc1 L_k3_exit
""")
    stamp_start(a)
    a(f"""
s_load_dwordx2 s[36:37], s[0:1], 0
s_load_dwordx2 s[38:39], s[0:1], 56
s_load_dwordx2 s[50:51], s[0:1], 72
v_lshrrev_b32 v{vT0}, 6, v0
v_and_b32 v{vLane}, 63, v0
v_readfirstlane_b32 s3, v{vT0}
v_lshlrev_b32 v{vL16}, 4, v{vLane}
s_and_b32 s4, s2, 7
s_lshr_b32 s5, s2, 3
s_and_b32 s6, s5, 3
s_lshl_b32 s7, s4, 2
s_add_u32 s6, s6, s7           ; rb64
s_lshr_b32 s7, s5, 2           ; cb
s_mul_i32 s20, s3, 18
s_mul_i32 s21, s7, 288
s_add_u32 s21, s21, s20
s_lshl_b32 s21, s21, 10
s_add_u32 s21, s21, {W2}       ; A0
s_add_u32 s22, s21, {144*1024} ; A1
s_mul_i32 s23, s6, 288
s_add_u32 s23, s23, s20
s_lshl_b32 s23, s23, 10
s_add_u32 s23, s23, {ACT}      ; B0
s_add_u32 s24, s23, {144*1024} ; B1
v_lshrrev_b32 v{vT0}, 3, v0
v_lshlrev_b32 v{vXo}, 10, v{vT0}
v_and_b32 v{vT1}, 7, v0
v_lshl_add_u32 v{vXo}, v{vT1}, 4, v{vXo}
s_lshl_b32 s25, s6, 16
s_lshl_b32 s26, s7, 7
s_add_u32 s25, s25, s26
s_waitcnt lgkmcnt(0)
""")
    srd(a, 16, 50, WS_END)
    def loads(k):
        b = FR + 16*(k % PD)
        if k % 4 == 0 and k > 0:
            for s in (21, 22, 23, 24): a(f"s_add_u32 s{s}, s{s}, 4096")
        for i, s in enumerate((21, 23, 22, 24)):
            a(f"buffer_load_dwordx4 {vr(b+4*i)}, v{vL16}, s[16:19], s{s} offen offset:{1024*(k%4)}")
    for k in range(PD): loads(k)
    srd(a, 8, 36, 0x200000)
    srd(a, 12, 38, 0x200000)
    for k in range(18):
        b = FR + 16*(k % PD)
        later = min(17, k+PD-1) - k
        extra = 1 if k >= 9 else 0
        a(f"s_waitcnt vmcnt({4*later+extra})")
        if k == 0: stamp(a, 1)
        if k == 9: stamp(a, 2)
        c = "0" if k == 0 else None
        A0, B0, A1, B1 = b, b+4, b+8, b+12
        a(mfma(ACC+0,  A0, B0, c))
        a(mfma(ACC+16, A1, B0, c))
        a(mfma(ACC+32, A0, B1, c))
        a(mfma(ACC+48, A1, B1, c))
        if k+PD < 18: loads(k+PD)
        if k == 8: a(f"buffer_load_dwordx4 {vr(XR)}, v{vXo}, s[8:11], s25 offen")
    stamp(a, 3)
    a(f"""
s_mul_i32 s29, s3, 17408
v_add_u32 v{vT2}, s29, v{vL16}
s_nop 7
s_nop 1
""")
    for tile in range(4):
        for q in range(4):
            a(f"ds_write_b128 v{vT2}, {vr(ACC+16*tile+4*q)} offset:{(tile*4+q)*1088}")
    a(f"""
v_lshrrev_b32 v{vT2}, 5, v{vT0}
v_lshl_add_u32 v{vT2}, v{vT2}, 3, v{vT1}
v_mul_u32_u24 v{vT2}, 1088, v{vT2}
v_and_b32 v{vT0}, 31, v{vT0}
v_lshl_add_u32 v{vT2}, v{vT0}, 4, v{vT2}
v_add_u32 v{vT0}, {3*17408}, v{vT2}
v_add_u32 v{vT1}, {6*17408}, v{vT2}
s_waitcnt lgkmcnt(0)
s_barrier
""")
    for w in range(8):
        ad = (vT2, vT0, vT1)[w//3]
        off = (w % 3)*17408
        a(f"ds_read_b128 {vr(FR+8*w)}, v{ad} offset:{off}")
        a(f"ds_read_b128 {vr(FR+8*w+4)}, v{ad} offset:{off+512}")
        if w == 6: a("s_waitcnt lgkmcnt(10)")
    E = 96
    a("s_waitcnt vmcnt(0)")
    for r in range(4):
        a(f"v_lshlrev_b32 v{E+2*r}, 16, v{XR+r}")
        a(f"v_and_b32 v{E+2*r+1}, 0xffff0000, v{XR+r}")
    for w in range(8):
        a(f"s_waitcnt lgkmcnt({14-2*w})" if w > 0 else "s_waitcnt lgkmcnt(12)")
        for r in range(8):
            a(f"v_add_f32 v{E+r}, v{E+r}, v{FR+8*w+r}")
    for r in range(4): a(f"v_cvt_pk_bf16_f32 v{E+8+r}, v{E+2*r}, v{E+2*r+1}")
    a(f"buffer_store_dwordx4 {vr(E+8)}, v{vXo}, s[12:15], s25 offen")
    stamp_end(a, 2)
    a("L_k3_exit:\ns_endpgm")
```

```python
import sys
sys.path.insert(0, "gen")
from common import *
from k1 import *
from k2 import *
from k3 import *

def build(out, **opt):
    a = A()
    PROF['on'] = bool(opt.get('prof', 0))
    hdr = open("cdna_kernels/" + NAME + ".s.ref").read().split("; Override launch")[0]
    launches = [("k1_kernel", 256, 512, K1_LDS), ("k2_kernel", 256, 512, K2_LDS), ("k3_kernel", 256, 512, K3_LDS)]
    launches = [("nop_kernel", 256, 64, 0)]*opt.get("pre", 0) + launches + [("nop_kernel", 256, 64, 0)]*opt.get("post", 0)
    for k, g, b, l in launches:
        hdr += f"; @launch kernel={k} grid=({g},1,1) block=({b},1,1) lds={l}\n"
    hdr += '.amdgcn_target "amdgcn-amd-amdhsa--gfx950"\n.text\n'
    gen_k1(a); gen_k2(a, **{k: v for k, v in opt.items() if k in ("pace","noatt","nogemm","zpad")}); gen_k3(a)
    extra = ""
    if opt.get("pre") or opt.get("post"):
        kernel_head(a, "nop_kernel"); a("s_endpgm"); extra = descriptor("nop_kernel", 8)
    txt = hdr + a.text() + '.section .rodata,"a"\n' + descriptor("k1_kernel", 256) + descriptor("k2_kernel", 256) + descriptor("k3_kernel", 256) + extra
    open(out, "w").write(txt)

if __name__ == "__main__":
    out = sys.argv[1] if len(sys.argv) > 1 else "cdna_kernels/" + NAME + ".s"
    opt = dict((kv.split("=")[0], int(kv.split("=")[1])) for kv in sys.argv[2:])
    build(out, **opt)
```

```python
import sys
sys.path.insert(0, "gen")
from common import *

LDS_BYTES = 163840
SLOT = 28928
NS = 5
SCRATCH = NS*SLOT
WB = 65536
FL = 0x1100000
FQ, FH, FO = FL, FL + 0x10000, FL + 0x20000
POLL_MAX = 1 << 17

sX, sW, sWS, sG, sU, sWD, sWO, sOUT, sDBG = 8, 12, 16, 20, 24, 28, 36, 40, 44
sWave, sXcd, sI, sRb, sJc = 3, 4, 5, 6, 7
sTt, sRot, sHead, sQb = 32, 33, 34, 35
sTok = 48
sOnes, sMask = 76, 77

def S(n): return f"s[{n}:{n+3}]"

class Cnt:
    def __init__(self, a, name, cap):
        self.a, self.name, self.cap, self.ops = a, name, cap, []
    def issue(self, text, tag):
        self.a(text); self.ops.append(tag)
    def need(self, tag):
        idx = max(i for i, t in enumerate(self.ops) if t == tag)
        return len(self.ops) - 1 - idx
    def wait(self, *tags):
        tags = [t for t in tags if t in self.ops]
        if not tags: return
        n = min(self.need(t) for t in tags)
        assert n <= self.cap, (self.name, n)
        self.a(f"s_waitcnt {self.name}({n})")
        self.ops = self.ops[len(self.ops)-n:] if n else []
    def drain(self):
        self.a(f"s_waitcnt {self.name}(0)"); self.ops = []

def token_check(a, vt, vz, lbl):
    a(f"""
s_mov_b32 s50, {POLL_MAX}
s_branch {lbl}_w
{lbl}:
buffer_load_dwordx2 v[{vt}:{vt+1}], v{vz}, {S(sDBG)}, 0 offen sc1
s_waitcnt vmcnt(0)
{lbl}_w:
v_readfirstlane_b32 s{sTok}, v{vt}
v_readfirstlane_b32 s{sTok+1}, v{vt+1}
s_sub_u32 s50, s50, 1
s_cbranch_scc1 {lbl}_x
s_cmp_eq_u32 s{sTok}, 0
s_cbranch_scc1 {lbl}
{lbl}_x:
""")

def set_flag(a, soff, vt, vz):
    return f"""
v_mov_b32 v{vt}, s{sTok}
v_mov_b32 v{vt+1}, s{sTok+1}
s_mov_b64 exec, 1
buffer_store_dwordx2 v[{vt}:{vt+1}], v{vz}, {S(sWS)}, s{soff} offen sc1
s_mov_b64 exec, -1
"""

def poll(a, soff, smask, vt, vl, lbl, issued=False):
    a(f"s_mov_b32 s50, {POLL_MAX}")
    if issued: a(f"s_branch {lbl}_w")
    a(f"""
{lbl}:
s_mov_b64 exec, s[{smask}:{smask+1}]
buffer_load_dwordx2 v[{vt}:{vt+1}], v{vl}, {S(sWS)}, s{soff} offen sc1
s_mov_b64 exec, -1
{lbl}_w:
s_waitcnt vmcnt(0)
v_cmp_eq_u64 vcc, s[{sTok}:{sTok+1}], v[{vt}:{vt+1}]
s_sub_u32 s50, s50, 1
s_cbranch_scc1 {lbl}_x
s_and_b64 vcc, vcc, s[{smask}:{smask+1}]
s_cmp_eq_u64 vcc, s[{smask}:{smask+1}]
s_cbranch_scc0 {lbl}
{lbl}_x:
""")

OT = [16, 32, 48, 64, 80, 96, 112, 240]
RA = dict(Q=128, KV=(160, 172), S=(184, 200), P=(216, 224), T=232)

def att_phase(a, n, first=False, pre=None, mid=None, post=None):
    R = RA
    S_ = R['S']; P = R['P']; Q = R['Q']; KV = R['KV']; T = R['T']
    Sc, Sn = S_[n % 2], S_[(n+1) % 2]
    Pc, Pp = P[n % 2], P[(n-1) % 2]
    kn = KV[((n+1)//8) % 2]
    vp = KV[((n-1)//8) % 2]
    qn = (n+1) % 8
    qp = (n-1) % 8
    skip_pv = first and n == 0
    c0 = "0" if (first and 1 <= n <= 8) else None
    if pre: a(pre)
    a(mfma(Sn, kn, Q+4*qn, "0"))
    if not skip_pv: a(f"v_cvt_pk_bf16_f32 v{Pp+7}, v{T}, v{T+1}")
    for i in range(8):
        d0, d1 = (Sc+2*i, Sc+2*i+1) if i < 7 else (T, T+1)
        a(f"v_exp_f32 v{d0}, v{Sc+2*i}")
        a(f"v_exp_f32 v{d1}, v{Sc+2*i+1}")
        if i >= 1: a(f"v_cvt_pk_bf16_f32 v{Pc+i-1}, v{Sc+2*i-2}, v{Sc+2*i-1}")
        if i == 2:
            if mid: a(mid)
            if not skip_pv: a(mfma(OT[qp], vp+4, Pp, c0))
        if i == 5 and not skip_pv: a(mfma(OT[qp], vp+8, Pp+4))
        if i == 6 and post: a(post)

def gen(a, name, p2=8, D=2, rotm=1, natt=7, t4prio=0, cpf=1, bflag=11, bpoll=13, nocs=0, nost=0):
    kernel_head(a, name)
    vL16, vZ, vT0, vT1, vT2 = 1, 2, 3, 4, 5
    vTk = 6
    vXo, vWo, vGo = 8, 9, 10
    vTA = 11
    XA = 12
    WF = 16
    XR = 128
    a("s_cmp_ge_u32 s2, 256\ns_cbranch_scc1 L_exit")
    stamp_start(a)
    a(f"""
s_load_dwordx2 s[{sX}:{sX+1}], s[0:1], 0
s_load_dwordx2 s[{sW}:{sW+1}], s[0:1], 8
s_load_dwordx2 s[{sWS}:{sWS+1}], s[0:1], 72
s_load_dwordx2 s[{sDBG}:{sDBG+1}], s[0:1], 64
s_load_dwordx2 s[{sG}:{sG+1}], s[0:1], 32
s_load_dwordx2 s[{sU}:{sU+1}], s[0:1], 40
s_load_dwordx2 s[{sWD}:{sWD+1}], s[0:1], 48
s_load_dwordx2 s[{sWO}:{sWO+1}], s[0:1], 16
s_load_dwordx2 s[{sOUT}:{sOUT+1}], s[0:1], 56
v_lshrrev_b32 v{vT0}, 6, v0
v_and_b32 v{vT1}, 63, v0
v_readfirstlane_b32 s{sWave}, v{vT0}
s_and_b32 s{sXcd}, s2, 7
s_lshr_b32 s{sI}, s2, 3
""")
    if cpf:
        a(f"""
s_cmp_lg_u32 s{sWave}, 7
s_cbranch_scc1 L_nocpf
s_getpc_b64 s[52:53]
L_pc:
s_and_b32 s51, s{sI}, 7
s_lshl_b32 s51, s51, 13
v_lshl_add_u32 v{vT2}, v{vT1}, 7, s51
v_cmp_gt_u32 vcc, L_exit-L_pc, v{vT2}
s_and_saveexec_b64 s[54:55], vcc
s_cbranch_execz L_cpfx
global_load_dword v255, v{vT2}, s[52:53]
L_cpfx:
s_mov_b64 exec, -1
L_nocpf:
""")
    a(f"""
s_and_b32 s51, s{sI}, 3
s_lshr_b32 s{sRb}, s{sXcd}, 1
s_lshl_b32 s{sRb}, s{sRb}, 2
s_add_u32 s{sRb}, s{sRb}, s51              ; rb128
s_lshr_b32 s{sQb}, s{sI}, 2
s_and_b32 s{sJc}, s{sXcd}, 1
s_lshl_b32 s{sJc}, s{sJc}, 3
s_add_u32 s{sJc}, s{sJc}, s{sQb}           ; jc
s_lshl_b32 s{sHead}, s{sXcd}, 2
s_add_u32 s{sHead}, s{sHead}, s51
s_and_b32 s{sTt}, s{sWave}, 3
""")
    if rotm == 0: a(f"s_mov_b32 s{sRot}, 0")
    elif rotm == 1: a(f"s_add_u32 s{sRot}, s51, s{sQb}\ns_and_b32 s{sRot}, s{sRot}, 1\ns_lshl_b32 s{sRot}, s{sRot}, 2")
    elif rotm == 2: a(f"s_add_u32 s{sRot}, s51, s{sQb}\ns_and_b32 s{sRot}, s{sRot}, 3\ns_lshl_b32 s{sRot}, s{sRot}, 1")
    else: a(f"s_lshl_b32 s{sRot}, s51, 1\ns_add_u32 s{sRot}, s{sRot}, s{sQb}\ns_and_b32 s{sRot}, s{sRot}, 7")
    a(f"""
v_lshlrev_b32 v{vL16}, 4, v{vT1}
v_mov_b32 v{vZ}, 0
s_lshr_b32 s51, s{sWave}, 2                ; u
v_bfe_u32 v{vT0}, v{vT1}, 4, 2             ; (r8>>1)&3
s_lshl_b32 s52, s51, 2
v_or_b32 v{vT0}, s52, v{vT0}
v_and_b32 v{vT2}, 7, v{vT1}
v_xor_b32 v{vT0}, v{vT0}, v{vT2}
v_lshrrev_b32 v{vT2}, 3, v{vT1}
v_lshlrev_b32 v{vXo}, 10, v{vT2}
v_lshl_add_u32 v{vXo}, v{vT0}, 4, v{vXo}
v_lshrrev_b32 v{vT0}, 2, v{vT1}
v_mul_u32_u24 v{vWo}, 3072, v{vT0}
v_and_b32 v{vT0}, 3, v{vT1}
v_lshl_add_u32 v{vWo}, v{vT0}, 4, v{vWo}
s_lshl_b32 s56, s{sRb}, 3
s_lshl_b32 s52, s{sTt}, 1
s_add_u32 s52, s52, s51                    ; 2tt+u
s_add_u32 s56, s56, s52
s_lshl_b32 s56, s56, 14
s_lshl_b32 s57, s52, 11
s_mul_i32 s58, s{sTt}, {16*3072}
s_lshl_b32 s52, s{sJc}, 6
s_add_u32 s58, s58, s52
s_mul_i32 s59, s{sTt}, 3072
s_add_u32 s59, s59, 16384
""")
    for sr_, nb in ((sX, 0x200000), (sW, 512*3072), (sWS, WS_END), (sDBG, 256), (sG, 512*3584), (sU, 512*3584),
                    (sWD, 1792*1024), (sWO, 512*1024), (sOUT, 0x200000)):
        a(f"s_mov_b32 s{sr_+2}, {hex(nb)}\ns_mov_b32 s{sr_+3}, 0x00020000")

    def dma(vm, role, st):
        slot = (st % NS)*SLOT
        c = st % 8
        a(f"s_add_u32 s51, s{sRot}, {c}\ns_and_b32 s51, s51, 7")
        if st < 8:
            a(f"""
s_lshl_b32 s52, s51, 7
s_add_u32 s52, s52, s56
s_add_u32 m0, s57, {slot}
s_add_u32 s53, s52, {8192-1024}
""")
            vm.issue(f"buffer_load_dwordx4 v{vXo}, {S(sX)}, s52 offen lds", ("d", st))
            vm.issue(f"buffer_load_dwordx4 v{vXo}, {S(sX)}, s53 offen offset:1024 lds", ("d", st))
            a(f"""
s_mul_i32 s52, s51, {64*3072}
s_add_u32 m0, s59, {slot}
s_add_u32 s52, s52, s58
""")
            for seg in ((0, 1) if role == "A" else (2,)):
                vm.issue(f"buffer_load_dwordx4 v{vWo}, {S(sW)}, s52 offen offset:{seg*1024} lds", ("d", st))
        else:
            a(f"""
s_mul_i32 s52, s51, {64*3584}
s_add_u32 s52, s52, s60
s_add_u32 s53, s52, {32*3584}
""")
            for hf in range(2):
                for mat in range(2):
                    a(f"s_add_u32 m0, s61, {slot + hf*14464 + mat*7296}\ns_nop 0")
                    vm.issue(f"buffer_load_dwordx4 v{vGo}, {S(sU if mat else sG)}, s{52+hf} offen lds", ("d", st))

    def common_setup():
        a(f"""
v_mul_u32_u24 v{vT0}, 4682, v0
v_lshrrev_b32 v{vT0}, 16, v{vT0}
v_mul_u32_u24 v{vT2}, 14, v{vT0}
v_sub_u32 v{vT2}, v0, v{vT2}
v_mul_u32_u24 v{vGo}, 3584, v{vT0}
v_lshl_add_u32 v{vGo}, v{vT2}, 4, v{vGo}
s_mul_i32 s60, s{sJc}, 224
s_lshl_b32 s61, s{sWave}, 10
v_bfe_u32 v{vT0}, v{vT1}, 1, 2
v_bfe_u32 v{vT2}, v{vT1}, 4, 1
v_lshl_or_b32 v{vT0}, v{vT2}, 2, v{vT0}    ; f
v_lshrrev_b32 v{vT2}, 5, v{vT1}            ; h
v_xor_b32 v{vT0}, v{vT0}, v{vT2}
v_and_b32 v{vTA}, 31, v{vT1}
v_lshlrev_b32 v{vTA}, 7, v{vTA}
s_lshl_b32 s51, s{sTt}, 12
v_add_u32 v{vTA}, s51, v{vTA}
""")
        for kk in range(4):
            a(f"v_xor_b32 v{XA+kk}, {2*kk}, v{vT0}\nv_lshl_add_u32 v{XA+kk}, v{XA+kk}, 4, v{vTA}")
        a(f"""
v_bfe_u32 v{vT0}, v{vT1}, 2, 2             ; r
v_lshl_add_u32 v{vT0}, v{vT2}, 3, v{vT0}   ; 8h+r
v_lshlrev_b32 v{vTA}, 6, v{vT0}
v_bfe_u32 v{vT2}, v{vT1}, 4, 1
v_lshl_add_u32 v{vTA}, v{vT2}, 5, v{vTA}
v_and_b32 v{vT2}, 3, v{vT1}
v_lshl_add_u32 v{vTA}, v{vT2}, 3, v{vTA}
v_add_u32 v{vTA}, 16384, v{vTA}
s_mov_b32 s{sOnes}, 0x3f803f80
s_mov_b32 s{sMask}, 0xffff0000
""")

    def gemm1(role):
        A_ = role == "A"
        vm = Cnt(a, "vmcnt", 63); lg = Cnt(a, "lgkmcnt", 15)
        segs = (0, 1) if A_ else (2,)
        fts = (0, 1, 2) if A_ else (3, 4, 5, 6)
        ACC2 = 48
        ACC1 = 96
        M = 40 if A_ else 112
        fset = 12 if A_ else 16
        CS = M
        ST = M+4
        vTB = vWo
        a("s_waitcnt lgkmcnt(0)")
        if not A_:
            a(f"""
s_or_b32 s51, s2, s{sTt}
s_cmp_lg_u32 s51, 0
s_cbranch_scc1 L_notok
s_memrealtime s[52:53]
s_waitcnt lgkmcnt(0)
s_or_b32 s52, s52, 1
v_mov_b32 v{vTk}, s52
v_mov_b32 v{vTk+1}, s53
s_mov_b64 exec, 1
buffer_store_dwordx2 v[{vTk}:{vTk+1}], v{vZ}, {S(sDBG)}, 0 offen sc1
s_mov_b64 exec, -1
L_notok:
""")
        for st in range(D): dma(vm, role, st)
        common_setup()
        for r in range(8): a(f"v_mov_b32 v{M+r}, 0")
        def tiles(st): return segs if st < 8 else fts
        def wreads(k, j):
            st, kk = k//4, k % 4
            t = tiles(st)[j]
            dst = WF + fset*(k % 2) + 4*j
            for e in range(2):
                off = kk*3072 + t*1024 + e*256 if st < 8 else (kk >> 1)*14464 + (kk & 1)*3584 + e*896 + t*32
                lg.issue(f"ds_read_b64_tr_b16 {vr(dst+2*e,2)}, v{vTA} offset:{off}", ("w", k, j))
        def xreads(st):
            for kk in range(4):
                lg.issue(f"ds_read_b128 {vr(XR+16*st+4*kk)}, v{XA+kk}", ("x", st*4+kk))
        def enter_stage(st):
            vm.wait(("d", st))
            if st == bflag: vm.wait("st")
            a("s_barrier")
            if st > 0:
                delta = SLOT if st % NS else -(NS-1)*SLOT
                dl = hex(delta & 0xffffffff)
                if st == 8:
                    a(f"""
v_and_b32 v{vT1}, 63, v0
v_lshrrev_b32 v{vT2}, 5, v{vT1}
v_bfe_u32 v{vT0}, v{vT1}, 2, 2
v_lshl_add_u32 v{vT0}, v{vT2}, 3, v{vT0}
v_mul_u32_u24 v{vTA}, 224, v{vT0}
v_bfe_u32 v{vT2}, v{vT1}, 4, 1
v_mul_u32_u24 v{vT2}, 7296, v{vT2}
v_add_u32 v{vTA}, v{vTA}, v{vT2}
v_and_b32 v{vT2}, 3, v{vT1}
v_lshl_add_u32 v{vTA}, v{vT2}, 3, v{vTA}
v_add_u32 v{vTA}, {(8 % NS)*SLOT}, v{vTA}
""")
                else:
                    a(f"v_add_u32 v{vTA}, {dl}, v{vTA}")
                if st < 8:
                    for kk in range(4): a(f"v_add_u32 v{XA+kk}, {dl}, v{XA+kk}")
        def post_stage(st):
            nd = st + D
            if nd < 16:
                if nd >= 8 and not A_:
                    a(f"s_cmp_eq_u32 s{sWave}, 7\ns_cbranch_scc1 L_w7_{st}")
                    dma(vm, role, nd)
                    a(f"L_w7r_{st}:")
                else:
                    dma(vm, role, nd)
            elif not A_:
                a(f"s_cmp_eq_u32 s{sWave}, 7\ns_cbranch_scc1 L_w7_{st}\nL_w7r_{st}:")
            if st == 6:
                vm.issue(f"buffer_load_dwordx2 v[{vTk}:{vTk+1}], v{vZ}, {S(sDBG)}, 0 offen sc1", "tok")
            if st == 9:
                vm.wait("tok")
                token_check(a, vTk, vZ, f"L_tok{role}")
            if st == 15 and A_: att_first_loads(vm)
        def cs_pack(j, dst):
            a(f"""
v_cvt_pk_bf16_f32 v{vT0}, v{CS+j}, v{CS+j}
v_lshlrev_b32 v{vT0}, 16, v{vT0}
v_sub_f32 v{vT2}, v{CS+j}, v{vT0}
v_cvt_pk_bf16_f32 v{dst}, v{vT0}, v{vT2}
""")
        BM = XA
        vR = ST+1
        def t1_end(kset):
            fr = WF + fset*kset
            a(f"""
s_nop 1
v_mov_b32 v{ST+2}, v{ST}
v_mov_b32 v{ST+3}, v{ST+1}
s_nop 1
v_permlane32_swap_b32 v{ST}, v{ST+2}
v_permlane32_swap_b32 v{ST+1}, v{ST+3}
s_nop 1
v_add_f32 v{ST}, v{ST}, v{ST+2}
v_add_f32 v{ST+1}, v{ST+1}, v{ST+3}
v_mul_f32 v{ST}, 0x3b000000, v{ST}
v_mul_f32 v{ST+1}, 0x3b000000, v{ST+1}
v_fma_f32 v{ST+1}, -v{ST}, v{ST}, v{ST+1}
v_max_f32 v{ST+1}, 0, v{ST+1}
v_cvt_pk_bf16_f32 v{BM}, -v{ST}, -v{ST}
v_mov_b32 v{BM+1}, 0
v_mov_b32 v{BM+2}, 0
v_mov_b32 v{BM+3}, 0
""")
            for j in range(len(segs)): cs_pack(j, fr+4*j)
            a(f"""
v_cvt_pk_bf16_f32 v{ST+1}, v{ST+1}, v{ST+1}
v_and_b32 v{ST+1}, s{sMask}, v{ST+1}
""")
            for j in range(len(segs)):
                a(mfma(ACC1+16*j, fr+4*j, BM) if A_ else mfma(ACC1, BM, fr))
            a(f"""
v_add_f32 v{ST+1}, 0x3727c5ac, v{ST+1}
v_cvt_pk_bf16_f32 v{ST+1}, v{ST+1}, v{ST+1}
v_and_b32 v{ST+1}, s{sMask}, v{ST+1}
v_sqrt_f32 v{ST+1}, v{ST+1}
""")
            for j in range(4): a(f"v_mov_b32 v{CS+j}, 0")
            a(f"""
v_cvt_pk_bf16_f32 v{ST+1}, v{ST+1}, v{ST+1}
v_and_b32 v{ST+1}, s{sMask}, v{ST+1}
v_rcp_f32 v{vR}, v{ST+1}
s_lshl_b32 s51, s{sJc}, 7
s_lshl_b32 s52, s{sRb}, 2
s_add_u32 s52, s52, s{sTt}                ; ttg
s_add_u32 s51, s51, s52
s_lshl_b32 s51, s51, 10
""")
            if A_:
                a(f"""
s_add_u32 s62, s51, {QF}
s_add_u32 s63, s51, {QF+65536}
s_add_u32 s64, s51, {KF}
s_add_u32 s65, s51, {KF+65536}
v_mul_f32 v{ST+2}, 0x3eb8aa3b, v{vR}
""")
                for j, sc, so in ((1, vR, 64), (0, ST+2, 62)):
                    c = ACC1+16*j
                    for r in range(16): a(f"v_mul_f32 v{c+r}, v{sc}, v{c+r}")
                    for r in range(8): a(f"v_cvt_pk_bf16_f32 v{c+r}, v{c+2*r}, v{c+2*r+1}")
                    vm.issue(f"buffer_store_dwordx4 {vr(c)}, v{vL16}, {S(sWS)}, s{so} offen sc1", "st")
                    vm.issue(f"buffer_store_dwordx4 {vr(c+4)}, v{vL16}, {S(sWS)}, s{so+1} offen sc1", "st")
            else:
                RB = 48
                a(f"""
s_add_u32 s62, s51, {VF}
v_and_b32 v{vT1}, 63, v0
s_lshl_b32 s51, s{sWave}, 8
s_add_u32 s51, s51, {SCRATCH}
v_lshl_add_u32 v{vT0}, v{vT1}, 2, s51
""")
                lg.issue(f"ds_write_b32 v{vT0}, v{vR}", "sw")
                a(f"""
v_lshrrev_b32 v{vT2}, 5, v{vT1}
v_lshl_add_u32 v{vT0}, v{vT2}, 4, s51
""")
                for q in range(4):
                    lg.issue(f"ds_read_b128 {vr(RB+4*q)}, v{vT0} offset:{32*q}", "sr")
                a(f"""
v_lshlrev_b32 v{vT2}, 8, v{vT2}
v_bfe_u32 v{vT0}, v{vT1}, 4, 1
v_lshl_add_u32 v{vT2}, v{vT0}, 16, v{vT2}
v_and_b32 v{vT0}, 15, v{vT1}
v_lshl_add_u32 v{vT2}, v{vT0}, 4, v{vT2}
""")
                lg.wait("sr")
                c = ACC1
                for r in range(16): a(f"v_mul_f32 v{c+r}, v{RB+r}, v{c+r}")
                for r in range(8): a(f"v_cvt_pk_bf16_f32 v{M+8+r}, v{c+2*r}, v{c+2*r+1}")
                vm.issue(f"buffer_store_dwordx4 {vr(M+8)}, v{vT2}, {S(sWS)}, s62 offen sc1", "st")
                vm.issue(f"buffer_store_dwordx4 {vr(M+12)}, v{vT2}, {S(sWS)}, s62 offen offset:512 sc1", "st")
        enter_stage(0)
        stamp(a, 1)
        if PROF["on"]: a("s_waitcnt lgkmcnt(0)")
        xreads(0)
        for j in range(len(tiles(0))): wreads(0, j)
        post_stage(0)
        for k in range(64):
            st, kk = k//4, k % 4
            tl = tiles(st)
            x = XR + 16*(st % 8) + 4*kk
            newstage = (kk == 3 and k+1 < 64)
            if newstage:
                enter_stage(st+1)
                if st+1 < 8: xreads(st+1)
            ntl = tiles((k+1)//4) if k+1 < 64 else ()
            for j in range(max(len(tl), len(ntl))):
                if j < len(tl):
                    lg.wait(("w", k, j), ("x", k))
                    w = WF + fset*(k % 2) + 4*j
                    acc = (ACC1 if st < 8 else ACC2) + 16*j
                    c = "0" if k in (0, 32) else None
                    a(mfma(acc, x, w, c) if (st < 8 and not A_) else mfma(acc, w, x, c))
                if j < len(ntl): wreads(k+1, j)
                if j < len(tl) and not nocs:
                    for r in range(4): a(f"v_dot2c_f32_bf16 v{CS+j}, s{sOnes}, v{w+r}")
                if j == 0 and st < 8 and not nost:
                    for r in range(4):
                        a(f"v_dot2c_f32_bf16 v{ST}, s{sOnes}, v{x+r}")
                        a(f"v_dot2c_f32_bf16 v{ST+1}, v{x+r}, v{x+r}")
            if newstage: post_stage(st+1)
            if k == 31:
                t1_end(1)
                stamp(a, 2)
                if PROF["on"]: lg.drain()
        a("s_barrier")
        fr = WF + fset*1
        a("s_nop 1")
        for j in range(len(fts)): cs_pack(j, fr+4*j)
        a(f"v_mul_f32 v{ST+2}, v{vR}, v{vR}\ns_nop 0")
        for j in range(len(fts)): a(mfma(ACC2+16*j, fr+4*j, BM))
        a(f"""
s_lshl_b32 s52, s{sRb}, 2
s_add_u32 s52, s52, s{sTt}                ; ttg
s_mul_i32 s51, s52, 144
s_mul_i32 s53, s{sJc}, 7
s_add_u32 s51, s51, s53
s_add_u32 s51, s51, {fts[0]}
s_lshl_b32 s51, s51, 10
s_add_u32 s51, s51, {ACT}
s_lshr_b32 s53, s52, 1
s_lshl_b32 s53, s53, 6
s_and_b32 s52, s52, 1
s_add_u32 s53, s53, s52
s_lshl_b32 s52, s{sJc}, 2
s_add_u32 s53, s53, s52
s_add_u32 s53, s53, {0 if A_ else 2}
s_lshl_b32 s53, s53, 3
s_add_u32 s67, s53, {FH}                  ; H flag
""")
        HS = 216 if A_ else 128
        for j in range(len(fts)):
            c = ACC2+16*j
            d = (236 + 4*j) if A_ else (128 + 4*j)
            for r in range(8): a(f"v_max_f32 v{c+r}, 0, v{c+r}")
            for r in range(8): a(f"v_mul_f32 v{c+8+r}, v{ST+2}, v{c+8+r}")
            for r in range(8): a(f"v_mul_f32 v{c+r}, v{c+r}, v{c+8+r}")
            for r in range(4): a(f"v_cvt_pk_bf16_f32 v{d+r}, v{c+2*r}, v{c+2*r+1}")
            vm.issue(f"buffer_store_dwordx4 {vr(d)}, v{vL16}, {S(sWS)}, s51 offen offset:{1024*j} sc1", "h")
        return vm

    vVo = vXo
    def att_first_loads(vm):
        R = RA
        a(f"""
v_and_b32 v{vT1}, 63, v0
v_lshrrev_b32 v{vT0}, 5, v{vT1}
v_lshlrev_b32 v{vVo}, 8, v{vT0}
v_and_b32 v{vT0}, 15, v{vT1}
v_lshl_add_u32 v{vVo}, v{vT0}, 4, v{vVo}
v_mov_b32 v{vT2}, 0x3f803f80
v_and_b32 v{vT0}, 27, v{vT1}
v_cmp_eq_u32 vcc, 16, v{vT0}
s_lshl_b32 s51, s{sHead}, 6
s_lshl_b32 s68, s{sWave}, 4
v_cndmask_b32 v{vT2}, 0, v{vT2}, vcc
s_add_u32 s68, s68, s51
s_lshl_b32 s68, s68, 10
s_add_u32 s69, s68, {VF}
s_add_u32 s68, s68, {KF}
s_lshl_b32 s70, s{sQb}, 3
s_add_u32 s70, s70, s51
s_lshl_b32 s70, s70, 10
s_add_u32 s70, s70, {QF}
s_mov_b32 s72, 0x0000ffff
s_mov_b32 s73, 0x0000ffff
""")
        for s_ in range(2):
            for r in range(8): a(f"v_mov_b32 v{R['KV'][s_]+4+r}, v{vT2}")
        vm.issue(f"buffer_load_dwordx4 {vr(R['KV'][0])}, v{vL16}, {S(sWS)}, s68 offen sc1", "k0")
        a(f"s_lshl_b32 s53, s{sWave}, 1")
        for q in range(8):
            a(f"s_add_u32 s51, s53, {q}\ns_and_b32 s51, s51, 7\ns_lshl_b32 s51, s51, 10\ns_add_u32 s51, s51, s70")
            vm.issue(f"buffer_load_dwordx4 {vr(R['Q']+4*q)}, v{vL16}, {S(sWS)}, s51 offen sc1", "q")
        a("s_mov_b64 exec, s[72:73]")
        vm.issue(f"buffer_load_dwordx4 {vr(R['KV'][0]+4)}, v{vVo}, {S(sWS)}, s69 offen sc1", "v0")
        vm.issue(f"buffer_load_dwordx4 {vr(R['KV'][0]+8)}, v{vVo}, {S(sWS)}, s69 offen offset:512 sc1", "v0")
        a("s_mov_b64 exec, -1\ns_add_u32 s68, s68, 1024")
        vm.issue(f"buffer_load_dwordx4 {vr(R['KV'][1])}, v{vL16}, {S(sWS)}, s68 offen sc1", "k1")

    a(f"s_cmp_ge_u32 s{sWave}, 4\ns_cbranch_scc1 L_gem")
    vm = gemm1("A")
    R = RA
    a("s_setprio 1")
    stamp(a, 3)
    vm.wait("v0")
    a(mfma(R['S'][0], R['KV'][0], R['Q'], "0"))
    stamp(a, 4)
    a("s_nop 7\ns_nop 3")
    def kload(s_):
        return f"s_add_u32 s68, s68, 1024\nbuffer_load_dwordx4 {vr(R['KV'][s_])}, v{vL16}, {S(sWS)}, s68 offen sc1"
    def vload(s_):
        kv = R['KV'][s_]
        return f"""
s_add_u32 s69, s69, 1024
s_mov_b64 exec, s[72:73]
buffer_load_dwordx4 {vr(kv+4)}, v{vVo}, {S(sWS)}, s69 offen sc1
buffer_load_dwordx4 {vr(kv+8)}, v{vVo}, {S(sWS)}, s69 offen offset:512 sc1
s_mov_b64 exec, -1
"""
    def body(first):
        for n in range(16):
            pre = mid = post = None
            if n % 8 == 7:
                pre = "s_waitcnt vmcnt(2)"
                mid = kload((n//8) % 2)
                if first and n == 7:
                    mid = set_flag(a, 67, vTk, vZ) + mid
            if n % 8 == 0: post = vload(((n//8)+1) % 2)
            if n % 8 == 1 and not (first and n == 1):
                mid = f"s_waitcnt vmcnt({4 if (first and n == 9) else 3})"
            att_phase(a, n, first, pre, mid, post)
    body(True)
    a(f"s_mov_b32 s51, {natt}\n.p2align 6\nL_att:")
    body(False)
    a("s_sub_u32 s51, s51, 1\ns_cmp_lg_u32 s51, 0\ns_cbranch_scc1 L_att")
    a(f"v_cvt_pk_bf16_f32 v{R['P'][1]+7}, v{R['T']}, v{R['T']+1}")
    if PROF["on"]: a("s_memtime s[96:97]")
    a("s_nop 0")
    a(mfma(OT[7], R['KV'][1]+4, R['P'][1]))
    a(mfma(OT[7], R['KV'][1]+8, R['P'][1]+4))
    EA = 8
    a(f"v_lshrrev_b32 v{vT0}, 2, v{vL16}")
    for d in range(1, 4):
        a(f"""
s_add_u32 s52, s{sWave}, {d}
s_and_b32 s52, s52, 3
s_mul_i32 s52, s52, 13824
s_add_u32 s52, s52, {(d-1)*4608}
v_add_u32 v{EA+2*d}, s52, v{vL16}
v_add_u32 v{EA+1+2*d}, s52, v{vT0}
""")
    a(f"""
s_mul_i32 s52, s{sWave}, 13824
v_add_u32 v{EA}, s52, v{vL16}
v_add_u32 v{EA+1}, s52, v{vT0}
""")
    for s_ in range(2, 8):
        o = OT[s_]
        d = s_ >> 1
        off = (s_ & 1)*2304
        a(f"ds_write_b128 v{EA+2*d}, {vr(o)} offset:{off}")
        a(f"ds_write_b128 v{EA+2*d}, {vr(o+4)} offset:{off+1024}")
        a(f"ds_write_b32 v{EA+1+2*d}, v{o+8} offset:{off+2048}")
    a(f"""
s_lshl_b32 s52, s{sQb}, 2
s_add_u32 s52, s52, s{sWave}
s_lshl_b32 s53, s52, 5
s_add_u32 s53, s53, s{sHead}
s_lshl_b32 s53, s53, 7
s_add_u32 s53, s53, {FO}             ; O flag
s_mul_i32 s52, s52, 288
s_add_u32 s52, s52, s{sHead}
s_add_u32 s52, s52, 112
s_lshl_b32 s52, s52, 10
s_add_u32 s52, s52, {ACT}
s_add_u32 s56, s52, {144*1024}
s_waitcnt vmcnt(0) lgkmcnt(0)
s_barrier
""")
    B = 128
    for t in range(2):
        for d in range(3):
            b = B + 36*t + 12*d
            off = d*4608 + t*2304
            a(f"ds_read_b128 {vr(b)}, v{EA} offset:{off}")
            a(f"ds_read_b128 {vr(b+4)}, v{EA} offset:{off+1024}")
            a(f"ds_read_b32 v{b+8}, v{EA+1} offset:{off+2048}")
            if t == 1 and d == 1: a("s_waitcnt lgkmcnt(9)")
    for t in range(2):
        o = OT[t]
        b = B + 36*t
        a(f"s_waitcnt lgkmcnt({9 if t == 0 else 0})")
        for r in range(9): a(f"v_add_f32 v{o+r}, v{o+r}, v{b+r}")
        for r in range(9): a(f"v_add_f32 v{b+12+r}, v{b+12+r}, v{b+24+r}")
        for r in (8,0,1,2,3,4,5,6,7): a(f"v_add_f32 v{o+r}, v{o+r}, v{b+12+r}")
        a(f"v_rcp_f32 v{o+9}, v{o+8}\ns_nop 0")
        for r in range(8): a(f"v_mul_f32 v{o+r}, v{o+r}, v{o+9}")
        for r in range(4): a(f"v_cvt_pk_bf16_f32 v{o+12+r}, v{o+2*r}, v{o+2*r+1}")
        a(f"buffer_store_dwordx4 {vr(o+12)}, v{vL16}, {S(sWS)}, s{52 if t == 0 else 56} offen sc1")
    a("s_waitcnt vmcnt(0)")
    a(set_flag(a, 53, vTk, vZ))
    if PROF["on"] and PROF.get("late"): a("s_waitcnt lgkmcnt(0)\ns_mov_b32 s82, s96\ns_memtime s[84:85]")
    a("s_branch L_fin")

    for st in range(8-D, 16):
        a(f"L_w7_{st}:")
        if st == bflag:
            a(f"""
s_lshl_b32 s51, s{sJc}, 4
s_add_u32 s51, s51, s{sRb}
s_lshl_b32 s51, s51, 7
s_add_u32 s51, s51, {FQ}
""")
            a(set_flag(a, 51, vTk, vZ))
        elif st == bpoll:
            a(f"""
s_waitcnt vmcnt(0)
s_lshr_b32 s66, s{sHead}, 1
s_lshl_b32 s66, s66, 11
s_add_u32 s66, s66, {FQ}
s_mov_b64 s[64:65], 0xffff
v_lshlrev_b32 v{vXo}, 3, v{vL16}
s_mov_b64 exec, s[64:65]
buffer_load_dwordx2 v[{vTk}:{vTk+1}], v{vXo}, {S(sWS)}, s66 offen sc1
s_mov_b64 exec, -1
""")
        elif st == bpoll+1:
            poll(a, 66, 64, vTk, vXo, "L_pollQ", issued=True)
        else:
            a("s_waitcnt vmcnt(0)")
        a(f"s_branch L_w7r_{st}")
    a("L_gem:")
    vm = gemm1("G")
    a("s_setprio 2")
    stamp(a, 3)
    sQ_ = sTt
    ACC = 192; WOF = 128+16; HR = 64; WF4 = 32; VD = 12; TD = 16; NR = 8
    WOFS = [144+8*i for i in range(6)] + [48, 56]
    vL8 = 14
    a(f"""
v_and_b32 v{vT1}, 63, v0
s_mul_i32 s55, s{sQ_}, 6144
s_add_u32 s55, s55, {WB}
v_lshrrev_b32 v{vT0}, 3, v{vT1}
v_lshlrev_b32 v{VD}, 10, v{vT0}
v_lshrrev_b32 v{vT2}, 2, v{vT1}
v_and_b32 v{vT2}, 4, v{vT2}
v_and_b32 v{vT0}, 7, v{vT1}
v_xor_b32 v{vT2}, v{vT2}, v{vT0}
v_lshl_add_u32 v{VD}, v{vT2}, 4, v{VD}
v_add_u32 v{VD+1}, {8*1024-1024}, v{VD}
v_lshlrev_b32 v{vL8}, 3, v{vT1}
v_lshlrev_b32 v{vL8+1}, 7, v{vT1}
v_lshrrev_b32 v{vT0}, 5, v{vT1}              ; h
v_bfe_u32 v{vT2}, v{vT1}, 2, 2               ; r
v_lshl_add_u32 v{vT2}, v{vT0}, 2, v{vT2}     ; 4h + r
v_lshlrev_b32 v{vT2}, 7, v{vT2}
v_bfe_u32 v{vT0}, v{vT1}, 4, 1
v_lshl_add_u32 v{vT2}, v{vT0}, 5, v{vT2}
v_and_b32 v{vT0}, 3, v{vT1}
v_lshl_add_u32 v{vT2}, v{vT0}, 3, v{vT2}
v_add_u32 v{vT2}, s55, v{vT2}
v_bfe_u32 v{vT0}, v{vT1}, 3, 1
v_lshl_add_u32 v{TD}, v{vT0}, 6, v{vT2}
v_xor_b32 v{vT0}, 1, v{vT0}
v_lshl_add_u32 v{TD+1}, v{vT0}, 6, v{vT2}
v_add_u32 v{TD+2}, {2*24576}, v{TD}
v_add_u32 v{TD+3}, {2*24576}, v{TD+1}
s_lshl_b32 s60, s{sQb}, 7
s_lshl_b32 s61, s{sQ_}, 17
s_add_u32 s61, s61, s60
s_mul_i32 s62, s{sQ_}, {28*16*1024}
s_add_u32 s62, s62, s60
s_mul_i32 s63, s{sHead}, 288
s_lshl_b32 s63, s63, 10
s_add_u32 s63, s63, {ACT}
s_mul_i32 s64, s{sQ_}, {28*1024}
s_add_u32 s64, s64, s63                      ; H soffset (t=0)
s_add_u32 s65, s64, {144*1024}
s_lshl_b32 s58, s{sQ_}, 13
s_add_u32 s58, s58, s63
s_add_u32 s58, s58, {112*1024}               ; O soffset (t=0)
s_add_u32 s59, s58, {144*1024}
s_lshl_b32 s68, s{sHead}, 9
s_add_u32 s68, s68, {FH}
s_lshl_b32 s69, s{sHead}, 12
s_add_u32 s69, s69, {FO}
s_lshl_b32 s56, s{sQ_}, 4
s_mov_b64 s[70:71], 0xffff
s_lshl_b64 s[70:71], s[70:71], s56
s_lshl_b32 s56, s{sQ_}, 3
s_mov_b64 s[72:73], 0xff
s_lshl_b64 s[72:73], s[72:73], s56
s_waitcnt vmcnt(0)
""")
    a(set_flag(a, 67, vTk, vZ))
    def w_dma(slot, srd_, soff):
        a(f"""
s_add_u32 m0, s55, {(slot>>1)*24576+(slot&1)*2048}
s_nop 0
buffer_load_dwordx4 v{VD}, {S(srd_)}, s{soff} offen lds
buffer_load_dwordx4 v{VD+1}, {S(srd_)}, s{soff} offen offset:1024 lds
s_add_u32 s{soff}, s{soff}, 16384
""")
    def w_reads(slot, dst):
        m = slot >> 1
        for i in range(2):
            for e in range(2):
                a(f"ds_read_b64_tr_b16 {vr(dst+4*i+2*e,2)}, v{TD+i+(2 if m>=2 else 0)} offset:{(m%2)*24576+(slot&1)*2048+e*1024}")
    for s_ in range(8): w_dma(s_, sWO, 61)
    for s_ in range(8):
        a(f"s_waitcnt vmcnt({14-2*s_})")
        w_reads(s_, WOFS[s_])
        if s_ % 2 == 1: a("s_waitcnt lgkmcnt(0)")
    for s_ in range(NR): w_dma(s_, sWD, 62)
    poll(a, 68, 70, 10, vL8, "L_pollH")
    if not PROF.get("late"): stamp(a, 4)
    a(f"s_setprio {t4prio}")
    def h_loads(k):
        b = HR + 8*(k % 8)
        if k % 4 == 0 and k > 0: a("s_add_u32 s64, s64, 4096\ns_add_u32 s65, s65, 4096")
        a(f"buffer_load_dwordx4 {vr(b)}, v{vL16}, {S(sWS)}, s64 offen offset:{1024*(k%4)} sc1")
        a(f"buffer_load_dwordx4 {vr(b+4)}, v{vL16}, {S(sWS)}, s65 offen offset:{1024*(k%4)} sc1")
    for k in range(8): h_loads(k)
    if PROF["on"]: a("s_waitcnt lgkmcnt(0)")
    w_reads(0, WF4)
    NK = 28
    def issued_after_H(k, at):
        n = 0
        if k < 8:
            n += 2*(7-k)
            n += 4*sum(1 for s in range(at) if s+8 < NK)
        else:
            n += 4*sum(1 for s in range(k-8+1, at) if s+8 < NK)
        return n
    for k in range(NK):
        if k == NK - p2:
            if PROF.get("late"): stamp(a, 3)
            a("s_barrier\ns_setprio 2")
        w = WF4 + 8*(k % 2)
        h = HR + 8*(k % 8)
        if k+1 < NK and k+1 >= 8: n = issued_after_H(k+1, k) + 2
        else: n = issued_after_H(k, k)
        a(f"s_waitcnt vmcnt({n}) lgkmcnt(0)")
        c = "0" if k == 0 else None
        a(mfma(ACC+0,  w,   h,   c))
        if k+1 < NK: w_reads((k+1) % NR, WF4 + 8*((k+1) % 2))
        a(mfma(ACC+16, w+4, h,   c))
        if k+8 < NK: w_dma(k % NR, sWD, 62)
        a(mfma(ACC+32, w,   h+4, c))
        a(mfma(ACC+48, w+4, h+4, c))
        if k+8 < NK: h_loads(k+8)
    if p2 == 0: a("s_barrier\ns_setprio 2")
    if PROF.get("late"): stamp(a, 4)
    poll(a, 69, 72, 10, vL8+1, "L_pollO")
    for k in range(8):
        b = HR + 8*k
        if k == 4: a("s_add_u32 s58, s58, 4096\ns_add_u32 s59, s59, 4096")
        a(f"buffer_load_dwordx4 {vr(b)}, v{vL16}, {S(sWS)}, s58 offen offset:{1024*(k%4)} sc1")
        a(f"buffer_load_dwordx4 {vr(b+4)}, v{vL16}, {S(sWS)}, s59 offen offset:{1024*(k%4)} sc1")
    if PROF["on"] and PROF.get("late"): a("s_memtime s[82:83]")
    for k in range(8):
        w = WOFS[k]; h = HR + 8*k
        a(f"s_waitcnt vmcnt({14-2*k})")
        a(mfma(ACC+0,  w,   h))
        a(mfma(ACC+16, w+4, h))
        a(mfma(ACC+32, w,   h+4))
        a(mfma(ACC+48, w+4, h+4))
    if PROF["on"] and PROF.get("late"): a("s_memtime s[84:85]")
    a(f"""
v_add_u32 v{vT0}, s55, v{vL16}
v_add_u32 v{vT1}, {2*24576}, v{vT0}
s_nop 7
""")
    for tile in range(4):
        for q in range(4):
            a(f"ds_write_b128 v{vT0 if tile < 2 else vT1}, {vr(ACC+16*tile+4*q)} offset:{(tile%2)*24576+q*1088}")
    a("L_fin:")
    E = 64; XRS = 60; FR = 128
    a(f"""
v_lshrrev_b32 v{vT0}, 3, v0                  ; token
v_and_b32 v{vT1}, 7, v0                      ; oct
v_lshlrev_b32 v10, 10, v{vT0}
v_lshl_add_u32 v10, v{vT1}, 4, v10
s_lshl_b32 s56, s{sHead}, 16
s_lshl_b32 s57, s{sQb}, 7
s_add_u32 s56, s56, s57
buffer_load_dwordx4 {vr(XRS)}, v10, {S(sX)}, s56 offen
v_lshrrev_b32 v{vT2}, 5, v{vT0}              ; t
v_lshrrev_b32 v11, 2, v{vT1}                 ; i
v_lshl_add_u32 v{vT2}, v{vT2}, 1, v11        ; tile
v_mul_u32_u24 v{vT2}, 24576, v{vT2}
v_and_b32 v11, 3, v{vT1}
v_mul_u32_u24 v11, 1088, v11
v_add_u32 v{vT2}, v{vT2}, v11
v_and_b32 v{vT0}, 31, v{vT0}
v_lshl_add_u32 v{vT2}, v{vT0}, 4, v{vT2}
v_add_u32 v{vT2}, {WB}, v{vT2}
s_waitcnt lgkmcnt(0)
s_barrier
""")
    for w in range(4):
        a(f"ds_read_b128 {vr(FR+8*w)}, v{vT2} offset:{w*6144}")
        a(f"ds_read_b128 {vr(FR+8*w+4)}, v{vT2} offset:{w*6144+512}")
    a("s_waitcnt vmcnt(0)")
    for r in range(4):
        a(f"v_lshlrev_b32 v{E+2*r}, 16, v{XRS+r}")
        a(f"v_and_b32 v{E+2*r+1}, 0xffff0000, v{XRS+r}")
    for w in range(4):
        a(f"s_waitcnt lgkmcnt({6-2*w})")
        for r in range(8):
            a(f"v_add_f32 v{E+r}, v{E+r}, v{FR+8*w+r}")
    for r in range(4): a(f"v_cvt_pk_bf16_f32 v{E+8+r}, v{E+2*r}, v{E+2*r+1}")
    a(f"buffer_store_dwordx4 {vr(E+8)}, v10, {S(sOUT)}, s56 offen")
    stamp_end(a, 0)
    a("L_exit:\ns_endpgm")

def build(out, **opt):
    a = A()
    PROF['on'] = bool(opt.pop('prof', 0)); PROF['late'] = bool(opt.pop('late', 0))
    hdr = open("cdna_kernels/" + NAME + ".s.ref").read().split("; Override launch")[0]
    hdr += f"; @launch grid=(256,1,1) block=(512,1,1) lds={LDS_BYTES}\n"
    hdr += '.amdgcn_target "amdgcn-amd-amdhsa--gfx950"\n.text\n'
    gen(a, NAME + "_kernel", **opt)
    txt = hdr + a.text() + '.section .rodata,"a"\n' + descriptor(NAME + "_kernel", 256)
    open(out, "w").write(txt)

if __name__ == "__main__":
    out = sys.argv[1] if len(sys.argv) > 1 else "cdna_kernels/" + NAME + ".s"
    opt = dict((kv.split("=")[0], int(kv.split("=")[1])) for kv in sys.argv[2:])
    build(out, **opt)
```

```python
NAME = "parallel_sum__mha_block__glu_gated_reglu__prompt"

XNF = 0x0
QF  = 0x200000
KF  = 0x400000
VF  = 0x600000
ACT = 0x800000
GU  = 0x1100000
W2  = 0x1480000
TS = 0x16C0000
WS_END = 0x1800000

class A:
    def __init__(self):
        self.l = []
    def __call__(self, s):
        for line in s.strip("\n").split("\n"):
            self.l.append(line if line.rstrip().endswith(":") or line.startswith(".") else "    " + line.strip())
    def text(self):
        return "\n".join(self.l) + "\n"

def vr(b, n=4):
    return f"v[{b}:{b+n-1}]" if n > 1 else f"v{b}"
def sr(b, n=4):
    return f"s[{b}:{b+n-1}]" if n > 1 else f"s{b}"

def mfma(d, a, b, c=None):
    cs = vr(d, 16) if c is None else (c if isinstance(c, str) else vr(c, 16))
    return f"v_mfma_f32_32x32x16_bf16 {vr(d,16)}, {vr(a)}, {vr(b)}, {cs}"

def srd(a, dst, base, nbytes):
    a(f"""
s_mov_b32 s{dst}, s{base}
s_mov_b32 s{dst+1}, s{base+1}
s_mov_b32 s{dst+2}, {hex(nbytes)}
s_mov_b32 s{dst+3}, 0x00020000
""")

def kernel_head(a, name):
    a(f".globl {name}\n.p2align 8\n.type {name},@function\n{name}:")

def descriptor(name, vgpr, sgpr=100):
    acc = (vgpr + 3)//4*4
    return f""".p2align 6
.amdhsa_kernel {name}
  .amdhsa_next_free_vgpr {vgpr}
  .amdhsa_next_free_sgpr {sgpr}
  .amdhsa_accum_offset {acc}
  .amdhsa_group_segment_fixed_size 0
  .amdhsa_kernarg_size 80
  .amdhsa_user_sgpr_count 2
  .amdhsa_user_sgpr_kernarg_segment_ptr 1
  .amdhsa_system_sgpr_workgroup_id_x 1
.end_amdhsa_kernel
"""

PROF = {"on": False}
def stamp(a, i):
    if PROF["on"]:
        a(f"s_memtime s[{80+2*i}:{81+2*i}]")
def stamp_start(a):
    if PROF["on"]:
        a("s_memrealtime s[92:93]\ns_memtime s[80:81]")
        for i in range(1, 6): a(f"s_mov_b32 s{80+2*i}, 0")
def stamp_end(a, kidx, wave_sgpr=3, nw=16):
    if PROF["on"]:
        a(f"""
s_waitcnt vmcnt(0)
s_memtime s[90:91]
s_memrealtime s[94:95]
s_mov_b64 exec, 1
s_waitcnt lgkmcnt(0)
v_mov_b32 v0, s92
v_mov_b32 v1, s94
v_mov_b32 v2, s80
v_mov_b32 v3, s82
v_mov_b32 v4, s84
v_mov_b32 v5, s86
v_mov_b32 v6, s88
v_mov_b32 v7, s90
s_lshl_b32 s78, s2, 4
s_add_u32 s78, s78, s{wave_sgpr}
s_lshl_b32 s78, s78, 5
s_add_u32 s78, s78, {TS + kidx*256*16*32}
v_mov_b32 v8, 0
buffer_store_dwordx4 v[0:3], v8, s[16:19], s78 offen
buffer_store_dwordx4 v[4:7], v8, s[16:19], s78 offen offset:16
""")

def dmark(a, idx, sdbg, neg=False):
    if PROF.get("dbgt"):
        a(f"""
s_memrealtime s[98:99]
s_waitcnt lgkmcnt(0)
""")
        if neg: a("s_not_b32 s98, s98")
        a(f"""
v_mov_b32 v254, s98
v_mov_b32 v253, {4*idx}
s_mov_b64 exec, 1
buffer_atomic_umax v254, v253, s[{sdbg}:{sdbg+3}], 0 offen
s_mov_b64 exec, -1
s_waitcnt vmcnt(0)
""")
```

```python
import sys
sys.path.insert(0, "gen")
from common import *

LDS_BYTES = 163840
SLOT = 28928
NS = 5
SCRATCH = NS*SLOT
WB = 65536
FL = 0x1100000
FQ, FH, FO = FL, FL + 0x10000, FL + 0x20000
POLL_MAX = 1 << 17

sX, sW, sWS, sG, sU, sWD, sWO, sOUT, sDBG = 8, 12, 16, 20, 24, 28, 36, 40, 44
sWave, sXcd, sI, sRb, sJc = 3, 4, 5, 6, 7
sTt, sRot, sHead, sQb = 32, 33, 34, 35
sTok = 48
sOnes, sMask = 76, 77

def S(n): return f"s[{n}:{n+3}]"

class Cnt:
    def __init__(self, a, name, cap):
        self.a, self.name, self.cap, self.ops = a, name, cap, []
    def issue(self, text, tag):
        self.a(text); self.ops.append(tag)
    def need(self, tag):
        idx = max(i for i, t in enumerate(self.ops) if t == tag)
        return len(self.ops) - 1 - idx
    def wait(self, *tags):
        tags = [t for t in tags if t in self.ops]
        if not tags: return
        n = min(self.need(t) for t in tags)
        assert n <= self.cap, (self.name, n)
        self.a(f"s_waitcnt {self.name}({n})")
        self.ops = self.ops[len(self.ops)-n:] if n else []
    def drain(self):
        self.a(f"s_waitcnt {self.name}(0)"); self.ops = []

def token_check(a, vt, vz, lbl):
    a(f"""
s_mov_b32 s50, {POLL_MAX}
s_branch {lbl}_w
{lbl}:
buffer_load_dwordx2 v[{vt}:{vt+1}], v{vz}, {S(sDBG)}, 0 offen sc1
s_waitcnt vmcnt(0)
{lbl}_w:
v_readfirstlane_b32 s{sTok}, v{vt}
v_readfirstlane_b32 s{sTok+1}, v{vt+1}
s_sub_u32 s50, s50, 1
s_cbranch_scc1 {lbl}_x
s_cmp_eq_u32 s{sTok}, 0
s_cbranch_scc1 {lbl}
{lbl}_x:
""")

def set_flag(a, soff, vt, vz):
    return f"""
v_mov_b32 v{vt}, s{sTok}
v_mov_b32 v{vt+1}, s{sTok+1}
s_mov_b64 exec, 1
buffer_store_dwordx2 v[{vt}:{vt+1}], v{vz}, {S(sWS)}, s{soff} offen sc1
s_mov_b64 exec, -1
"""

def poll(a, soff, smask, vt, vl, lbl, issued=False):
    a(f"s_mov_b32 s50, {POLL_MAX}")
    if issued: a(f"s_branch {lbl}_w")
    a(f"""
{lbl}:
s_mov_b64 exec, s[{smask}:{smask+1}]
buffer_load_dwordx2 v[{vt}:{vt+1}], v{vl}, {S(sWS)}, s{soff} offen sc1
s_mov_b64 exec, -1
{lbl}_w:
s_waitcnt vmcnt(0)
v_cmp_eq_u64 vcc, s[{sTok}:{sTok+1}], v[{vt}:{vt+1}]
s_sub_u32 s50, s50, 1
s_cbranch_scc1 {lbl}_x
s_and_b64 vcc, vcc, s[{smask}:{smask+1}]
s_cmp_eq_u64 vcc, s[{smask}:{smask+1}]
s_cbranch_scc0 {lbl}
{lbl}_x:
""")

OT = [16, 32, 48, 64, 80, 96, 112, 240]
RA = dict(Q=128, KV=(160, 172), S=(184, 200), P=(216, 224), T=232)

def att_phase(a, n, first=False, pre=None, mid=None, post=None):
    R = RA
    S_ = R['S']; P = R['P']; Q = R['Q']; KV = R['KV']; T = R['T']
    Sc, Sn = S_[n % 2], S_[(n+1) % 2]
    Pc, Pp = P[n % 2], P[(n-1) % 2]
    kn = KV[((n+1)//8) % 2]
    vp = KV[((n-1)//8) % 2]
    qn = (n+1) % 8
    qp = (n-1) % 8
    skip_pv = first and n == 0
    c0 = "0" if (first and 1 <= n <= 8) else None
    if pre: a(pre)
    a(mfma(Sn, kn, Q+4*qn, "0"))
    if not skip_pv: a(f"v_cvt_pk_bf16_f32 v{Pp+7}, v{T}, v{T+1}")
    for i in range(8):
        d0, d1 = (Sc+2*i, Sc+2*i+1) if i < 7 else (T, T+1)
        a(f"v_exp_f32 v{d0}, v{Sc+2*i}")
        a(f"v_exp_f32 v{d1}, v{Sc+2*i+1}")
        if i >= 1: a(f"v_cvt_pk_bf16_f32 v{Pc+i-1}, v{Sc+2*i-2}, v{Sc+2*i-1}")
        if i == 2:
            if mid: a(mid)
            if not skip_pv: a(mfma(OT[qp], vp+4, Pp, c0))
        if i == 5 and not skip_pv: a(mfma(OT[qp], vp+8, Pp+4))
        if i == 6 and post: a(post)

def gen(a, name, p2=8, D=2, rotm=1, natt=7, t4prio=0, cpf=1, bflag=11, bpoll=13, nocs=0, nost=0):
    kernel_head(a, name)
    vL16, vZ, vT0, vT1, vT2 = 1, 2, 3, 4, 5
    vTk = 6
    vXo, vWo, vGo = 8, 9, 10
    vTA = 11
    XA = 12
    WF = 16
    XR = 128
    a("s_cmp_ge_u32 s2, 256\ns_cbranch_scc1 L_exit")
    stamp_start(a)
    if PROF.get('dbgt'): a('s_memrealtime s[90:91]')
    a(f"""
s_load_dwordx2 s[{sX}:{sX+1}], s[0:1], 0
s_load_dwordx2 s[{sW}:{sW+1}], s[0:1], 8
s_load_dwordx2 s[{sWS}:{sWS+1}], s[0:1], 72
s_load_dwordx2 s[{sDBG}:{sDBG+1}], s[0:1], 64
s_load_dwordx2 s[{sG}:{sG+1}], s[0:1], 32
s_load_dwordx2 s[{sU}:{sU+1}], s[0:1], 40
s_load_dwordx2 s[{sWD}:{sWD+1}], s[0:1], 48
s_load_dwordx2 s[{sWO}:{sWO+1}], s[0:1], 16
s_load_dwordx2 s[{sOUT}:{sOUT+1}], s[0:1], 56
v_lshrrev_b32 v{vT0}, 6, v0
v_and_b32 v{vT1}, 63, v0
v_readfirstlane_b32 s{sWave}, v{vT0}
s_and_b32 s{sXcd}, s2, 7
s_lshr_b32 s{sI}, s2, 3
""")
    if cpf:
        a(f"""
s_cmp_lg_u32 s{sWave}, 7
s_cbranch_scc1 L_nocpf
s_getpc_b64 s[52:53]
L_pc:
s_and_b32 s51, s{sI}, 7
s_lshl_b32 s51, s51, 13
v_lshl_add_u32 v{vT2}, v{vT1}, 7, s51
v_cmp_gt_u32 vcc, L_exit-L_pc, v{vT2}
s_and_saveexec_b64 s[54:55], vcc
s_cbranch_execz L_cpfx
global_load_dword v255, v{vT2}, s[52:53]
L_cpfx:
s_mov_b64 exec, -1
L_nocpf:
""")
    a(f"""
s_and_b32 s51, s{sI}, 3
s_lshr_b32 s{sRb}, s{sXcd}, 1
s_lshl_b32 s{sRb}, s{sRb}, 2
s_add_u32 s{sRb}, s{sRb}, s51              ; rb128
s_lshr_b32 s{sQb}, s{sI}, 2
s_and_b32 s{sJc}, s{sXcd}, 1
s_lshl_b32 s{sJc}, s{sJc}, 3
s_add_u32 s{sJc}, s{sJc}, s{sQb}           ; jc
s_lshl_b32 s{sHead}, s{sXcd}, 2
s_add_u32 s{sHead}, s{sHead}, s51
s_and_b32 s{sTt}, s{sWave}, 3
""")
    if rotm == 0: a(f"s_mov_b32 s{sRot}, 0")
    elif rotm == 1: a(f"s_add_u32 s{sRot}, s51, s{sQb}\ns_and_b32 s{sRot}, s{sRot}, 1\ns_lshl_b32 s{sRot}, s{sRot}, 2")
    elif rotm == 2: a(f"s_add_u32 s{sRot}, s51, s{sQb}\ns_and_b32 s{sRot}, s{sRot}, 3\ns_lshl_b32 s{sRot}, s{sRot}, 1")
    else: a(f"s_lshl_b32 s{sRot}, s51, 1\ns_add_u32 s{sRot}, s{sRot}, s{sQb}\ns_and_b32 s{sRot}, s{sRot}, 7")
    a(f"""
v_lshlrev_b32 v{vL16}, 4, v{vT1}
v_mov_b32 v{vZ}, 0
s_lshr_b32 s51, s{sWave}, 2                ; u
v_bfe_u32 v{vT0}, v{vT1}, 4, 2             ; (r8>>1)&3
s_lshl_b32 s52, s51, 2
v_or_b32 v{vT0}, s52, v{vT0}
v_and_b32 v{vT2}, 7, v{vT1}
v_xor_b32 v{vT0}, v{vT0}, v{vT2}
v_lshrrev_b32 v{vT2}, 3, v{vT1}
v_lshlrev_b32 v{vXo}, 10, v{vT2}
v_lshl_add_u32 v{vXo}, v{vT0}, 4, v{vXo}
v_lshrrev_b32 v{vT0}, 2, v{vT1}
v_mul_u32_u24 v{vWo}, 3072, v{vT0}
v_and_b32 v{vT0}, 3, v{vT1}
v_lshl_add_u32 v{vWo}, v{vT0}, 4, v{vWo}
s_lshl_b32 s56, s{sRb}, 3
s_lshl_b32 s52, s{sTt}, 1
s_add_u32 s52, s52, s51                    ; 2tt+u
s_add_u32 s56, s56, s52
s_lshl_b32 s56, s56, 14
s_lshl_b32 s57, s52, 11
s_mul_i32 s58, s{sTt}, {16*3072}
s_lshl_b32 s52, s{sJc}, 6
s_add_u32 s58, s58, s52
s_mul_i32 s59, s{sTt}, 3072
s_add_u32 s59, s59, 16384
""")
    for sr_, nb in ((sX, 0x200000), (sW, 512*3072), (sWS, WS_END), (sDBG, 256), (sG, 512*3584), (sU, 512*3584),
                    (sWD, 1792*1024), (sWO, 512*1024), (sOUT, 0x200000)):
        a(f"s_mov_b32 s{sr_+2}, {hex(nb)}\ns_mov_b32 s{sr_+3}, 0x00020000")

    def dma(vm, role, st):
        slot = (st % NS)*SLOT
        c = st % 8
        a(f"s_add_u32 s51, s{sRot}, {c}\ns_and_b32 s51, s51, 7")
        if st < 8:
            a(f"""
s_lshl_b32 s52, s51, 7
s_add_u32 s52, s52, s56
s_add_u32 m0, s57, {slot}
s_add_u32 s53, s52, {8192-1024}
""")
            vm.issue(f"buffer_load_dwordx4 v{vXo}, {S(sX)}, s52 offen lds", ("d", st))
            vm.issue(f"buffer_load_dwordx4 v{vXo}, {S(sX)}, s53 offen offset:1024 lds", ("d", st))
            a(f"""
s_mul_i32 s52, s51, {64*3072}
s_add_u32 m0, s59, {slot}
s_add_u32 s52, s52, s58
""")
            for seg in ((0, 1) if role == "A" else (2,)):
                vm.issue(f"buffer_load_dwordx4 v{vWo}, {S(sW)}, s52 offen offset:{seg*1024} lds", ("d", st))
        else:
            a(f"""
s_mul_i32 s52, s51, {64*3584}
s_add_u32 s52, s52, s60
s_add_u32 s53, s52, {32*3584}
""")
            for hf in range(2):
                for mat in range(2):
                    a(f"s_add_u32 m0, s61, {slot + hf*14464 + mat*7296}\ns_nop 0")
                    vm.issue(f"buffer_load_dwordx4 v{vGo}, {S(sU if mat else sG)}, s{52+hf} offen lds", ("d", st))

    def common_setup():
        a(f"""
v_mul_u32_u24 v{vT0}, 4682, v0
v_lshrrev_b32 v{vT0}, 16, v{vT0}
v_mul_u32_u24 v{vT2}, 14, v{vT0}
v_sub_u32 v{vT2}, v0, v{vT2}
v_mul_u32_u24 v{vGo}, 3584, v{vT0}
v_lshl_add_u32 v{vGo}, v{vT2}, 4, v{vGo}
s_mul_i32 s60, s{sJc}, 224
s_lshl_b32 s61, s{sWave}, 10
v_bfe_u32 v{vT0}, v{vT1}, 1, 2
v_bfe_u32 v{vT2}, v{vT1}, 4, 1
v_lshl_or_b32 v{vT0}, v{vT2}, 2, v{vT0}    ; f
v_lshrrev_b32 v{vT2}, 5, v{vT1}            ; h
v_xor_b32 v{vT0}, v{vT0}, v{vT2}
v_and_b32 v{vTA}, 31, v{vT1}
v_lshlrev_b32 v{vTA}, 7, v{vTA}
s_lshl_b32 s51, s{sTt}, 12
v_add_u32 v{vTA}, s51, v{vTA}
""")
        for kk in range(4):
            a(f"v_xor_b32 v{XA+kk}, {2*kk}, v{vT0}\nv_lshl_add_u32 v{XA+kk}, v{XA+kk}, 4, v{vTA}")
        a(f"""
v_bfe_u32 v{vT0}, v{vT1}, 2, 2             ; r
v_lshl_add_u32 v{vT0}, v{vT2}, 3, v{vT0}   ; 8h+r
v_lshlrev_b32 v{vTA}, 6, v{vT0}
v_bfe_u32 v{vT2}, v{vT1}, 4, 1
v_lshl_add_u32 v{vTA}, v{vT2}, 5, v{vTA}
v_and_b32 v{vT2}, 3, v{vT1}
v_lshl_add_u32 v{vTA}, v{vT2}, 3, v{vTA}
v_add_u32 v{vTA}, 16384, v{vTA}
s_mov_b32 s{sOnes}, 0x3f803f80
s_mov_b32 s{sMask}, 0xffff0000
""")

    def gemm1(role):
        A_ = role == "A"
        vm = Cnt(a, "vmcnt", 63); lg = Cnt(a, "lgkmcnt", 15)
        segs = (0, 1) if A_ else (2,)
        fts = (0, 1, 2) if A_ else (3, 4, 5, 6)
        ACC2 = 48
        ACC1 = 96
        M = 40 if A_ else 112
        fset = 12 if A_ else 16
        CS = M
        ST = M+4
        vTB = vWo
        a("s_waitcnt lgkmcnt(0)")
        if not A_:
            a(f"""
s_or_b32 s51, s2, s{sTt}
s_cmp_lg_u32 s51, 0
s_cbranch_scc1 L_notok
s_memrealtime s[52:53]
s_waitcnt lgkmcnt(0)
s_or_b32 s52, s52, 1
v_mov_b32 v{vTk}, s52
v_mov_b32 v{vTk+1}, s53
s_mov_b64 exec, 1
buffer_store_dwordx2 v[{vTk}:{vTk+1}], v{vZ}, {S(sDBG)}, 0 offen sc1
s_mov_b64 exec, -1
L_notok:
""")
        for st in range(D): dma(vm, role, st)
        common_setup()
        for r in range(8): a(f"v_mov_b32 v{M+r}, 0")
        def tiles(st): return segs if st < 8 else fts
        def wreads(k, j):
            st, kk = k//4, k % 4
            t = tiles(st)[j]
            dst = WF + fset*(k % 2) + 4*j
            for e in range(2):
                off = kk*3072 + t*1024 + e*256 if st < 8 else (kk >> 1)*14464 + (kk & 1)*3584 + e*896 + t*32
                lg.issue(f"ds_read_b64_tr_b16 {vr(dst+2*e,2)}, v{vTA} offset:{off}", ("w", k, j))
        def xreads(st):
            for kk in range(4):
                lg.issue(f"ds_read_b128 {vr(XR+16*st+4*kk)}, v{XA+kk}", ("x", st*4+kk))
        def enter_stage(st):
            vm.wait(("d", st))
            if st == bflag: vm.wait("st")
            a("s_barrier")
            if st > 0:
                delta = SLOT if st % NS else -(NS-1)*SLOT
                dl = hex(delta & 0xffffffff)
                if st == 8:
                    a(f"""
v_and_b32 v{vT1}, 63, v0
v_lshrrev_b32 v{vT2}, 5, v{vT1}
v_bfe_u32 v{vT0}, v{vT1}, 2, 2
v_lshl_add_u32 v{vT0}, v{vT2}, 3, v{vT0}
v_mul_u32_u24 v{vTA}, 224, v{vT0}
v_bfe_u32 v{vT2}, v{vT1}, 4, 1
v_mul_u32_u24 v{vT2}, 7296, v{vT2}
v_add_u32 v{vTA}, v{vTA}, v{vT2}
v_and_b32 v{vT2}, 3, v{vT1}
v_lshl_add_u32 v{vTA}, v{vT2}, 3, v{vTA}
v_add_u32 v{vTA}, {(8 % NS)*SLOT}, v{vTA}
""")
                else:
                    a(f"v_add_u32 v{vTA}, {dl}, v{vTA}")
                if st < 8:
                    for kk in range(4): a(f"v_add_u32 v{XA+kk}, {dl}, v{XA+kk}")
        def post_stage(st):
            nd = st + D
            if nd < 16:
                if nd >= 8 and not A_:
                    a(f"s_cmp_eq_u32 s{sWave}, 7\ns_cbranch_scc1 L_w7_{st}")
                    dma(vm, role, nd)
                    a(f"L_w7r_{st}:")
                else:
                    dma(vm, role, nd)
            elif not A_:
                a(f"s_cmp_eq_u32 s{sWave}, 7\ns_cbranch_scc1 L_w7_{st}\nL_w7r_{st}:")
            if st == 6:
                vm.issue(f"buffer_load_dwordx2 v[{vTk}:{vTk+1}], v{vZ}, {S(sDBG)}, 0 offen sc1", "tok")
            if st == 9:
                vm.wait("tok")
                token_check(a, vTk, vZ, f"L_tok{role}")
            if st == 15 and A_: att_first_loads(vm)
        def cs_pack(j, dst):
            a(f"""
v_cvt_pk_bf16_f32 v{vT0}, v{CS+j}, v{CS+j}
v_lshlrev_b32 v{vT0}, 16, v{vT0}
v_sub_f32 v{vT2}, v{CS+j}, v{vT0}
v_cvt_pk_bf16_f32 v{dst}, v{vT0}, v{vT2}
""")
        BM = XA
        vR = ST+1
        def t1_end(kset):
            fr = WF + fset*kset
            a(f"""
s_nop 1
v_mov_b32 v{ST+2}, v{ST}
v_mov_b32 v{ST+3}, v{ST+1}
s_nop 1
v_permlane32_swap_b32 v{ST}, v{ST+2}
v_permlane32_swap_b32 v{ST+1}, v{ST+3}
s_nop 1
v_add_f32 v{ST}, v{ST}, v{ST+2}
v_add_f32 v{ST+1}, v{ST+1}, v{ST+3}
v_mul_f32 v{ST}, 0x3b000000, v{ST}
v_mul_f32 v{ST+1}, 0x3b000000, v{ST+1}
v_fma_f32 v{ST+1}, -v{ST}, v{ST}, v{ST+1}
v_max_f32 v{ST+1}, 0, v{ST+1}
v_cvt_pk_bf16_f32 v{BM}, -v{ST}, -v{ST}
v_mov_b32 v{BM+1}, 0
v_mov_b32 v{BM+2}, 0
v_mov_b32 v{BM+3}, 0
""")
            for j in range(len(segs)): cs_pack(j, fr+4*j)
            a(f"""
v_cvt_pk_bf16_f32 v{ST+1}, v{ST+1}, v{ST+1}
v_and_b32 v{ST+1}, s{sMask}, v{ST+1}
""")
            for j in range(len(segs)):
                a(mfma(ACC1+16*j, fr+4*j, BM) if A_ else mfma(ACC1, BM, fr))
            a(f"""
v_add_f32 v{ST+1}, 0x3727c5ac, v{ST+1}
v_cvt_pk_bf16_f32 v{ST+1}, v{ST+1}, v{ST+1}
v_and_b32 v{ST+1}, s{sMask}, v{ST+1}
v_sqrt_f32 v{ST+1}, v{ST+1}
""")
            for j in range(4): a(f"v_mov_b32 v{CS+j}, 0")
            a(f"""
v_cvt_pk_bf16_f32 v{ST+1}, v{ST+1}, v{ST+1}
v_and_b32 v{ST+1}, s{sMask}, v{ST+1}
v_rcp_f32 v{vR}, v{ST+1}
s_lshl_b32 s51, s{sJc}, 7
s_lshl_b32 s52, s{sRb}, 2
s_add_u32 s52, s52, s{sTt}                ; ttg
s_add_u32 s51, s51, s52
s_lshl_b32 s51, s51, 10
""")
            if A_:
                a(f"""
s_add_u32 s62, s51, {QF}
s_add_u32 s63, s51, {QF+65536}
s_add_u32 s64, s51, {KF}
s_add_u32 s65, s51, {KF+65536}
v_mul_f32 v{ST+2}, 0x3eb8aa3b, v{vR}
""")
                for j, sc, so in ((1, vR, 64), (0, ST+2, 62)):
                    c = ACC1+16*j
                    for r in range(16): a(f"v_mul_f32 v{c+r}, v{sc}, v{c+r}")
                    for r in range(8): a(f"v_cvt_pk_bf16_f32 v{c+r}, v{c+2*r}, v{c+2*r+1}")
                    vm.issue(f"buffer_store_dwordx4 {vr(c)}, v{vL16}, {S(sWS)}, s{so} offen sc1", "st")
                    vm.issue(f"buffer_store_dwordx4 {vr(c+4)}, v{vL16}, {S(sWS)}, s{so+1} offen sc1", "st")
            else:
                RB = 48
                a(f"""
s_add_u32 s62, s51, {VF}
v_and_b32 v{vT1}, 63, v0
s_lshl_b32 s51, s{sWave}, 8
s_add_u32 s51, s51, {SCRATCH}
v_lshl_add_u32 v{vT0}, v{vT1}, 2, s51
""")
                lg.issue(f"ds_write_b32 v{vT0}, v{vR}", "sw")
                a(f"""
v_lshrrev_b32 v{vT2}, 5, v{vT1}
v_lshl_add_u32 v{vT0}, v{vT2}, 4, s51
""")
                for q in range(4):
                    lg.issue(f"ds_read_b128 {vr(RB+4*q)}, v{vT0} offset:{32*q}", "sr")
                a(f"""
v_lshlrev_b32 v{vT2}, 8, v{vT2}
v_bfe_u32 v{vT0}, v{vT1}, 4, 1
v_lshl_add_u32 v{vT2}, v{vT0}, 16, v{vT2}
v_and_b32 v{vT0}, 15, v{vT1}
v_lshl_add_u32 v{vT2}, v{vT0}, 4, v{vT2}
""")
                lg.wait("sr")
                c = ACC1
                for r in range(16): a(f"v_mul_f32 v{c+r}, v{RB+r}, v{c+r}")
                for r in range(8): a(f"v_cvt_pk_bf16_f32 v{M+8+r}, v{c+2*r}, v{c+2*r+1}")
                vm.issue(f"buffer_store_dwordx4 {vr(M+8)}, v{vT2}, {S(sWS)}, s62 offen sc1", "st")
                vm.issue(f"buffer_store_dwordx4 {vr(M+12)}, v{vT2}, {S(sWS)}, s62 offen offset:512 sc1", "st")
        enter_stage(0)
        if PROF.get('dbgt'): a('s_memrealtime s[88:89]\ns_waitcnt lgkmcnt(0)')
        stamp(a, 1)
        if PROF["on"]: a("s_waitcnt lgkmcnt(0)")
        xreads(0)
        for j in range(len(tiles(0))): wreads(0, j)
        post_stage(0)
        for k in range(64):
            st, kk = k//4, k % 4
            tl = tiles(st)
            x = XR + 16*(st % 8) + 4*kk
            newstage = (kk == 3 and k+1 < 64)
            if newstage:
                enter_stage(st+1)
                if st+1 < 8: xreads(st+1)
            ntl = tiles((k+1)//4) if k+1 < 64 else ()
            for j in range(max(len(tl), len(ntl))):
                if j < len(tl):
                    lg.wait(("w", k, j), ("x", k))
                    w = WF + fset*(k % 2) + 4*j
                    acc = (ACC1 if st < 8 else ACC2) + 16*j
                    c = "0" if k in (0, 32) else None
                    a(mfma(acc, x, w, c) if (st < 8 and not A_) else mfma(acc, w, x, c))
                if j < len(ntl): wreads(k+1, j)
                if j < len(tl) and not nocs:
                    for r in range(4): a(f"v_dot2c_f32_bf16 v{CS+j}, s{sOnes}, v{w+r}")
                if j == 0 and st < 8 and not nost:
                    for r in range(4):
                        a(f"v_dot2c_f32_bf16 v{ST}, s{sOnes}, v{x+r}")
                        a(f"v_dot2c_f32_bf16 v{ST+1}, v{x+r}, v{x+r}")
            if newstage: post_stage(st+1)
            if k == 31:
                t1_end(1)
                stamp(a, 2)
                if PROF["on"]: lg.drain()
        a("s_barrier")
        fr = WF + fset*1
        a("s_nop 1")
        for j in range(len(fts)): cs_pack(j, fr+4*j)
        a(f"v_mul_f32 v{ST+2}, v{vR}, v{vR}\ns_nop 0")
        for j in range(len(fts)): a(mfma(ACC2+16*j, fr+4*j, BM))
        a(f"""
s_lshl_b32 s52, s{sRb}, 2
s_add_u32 s52, s52, s{sTt}                ; ttg
s_mul_i32 s51, s52, 144
s_mul_i32 s53, s{sJc}, 7
s_add_u32 s51, s51, s53
s_add_u32 s51, s51, {fts[0]}
s_lshl_b32 s51, s51, 10
s_add_u32 s51, s51, {ACT}
s_lshr_b32 s53, s52, 1
s_lshl_b32 s53, s53, 6
s_and_b32 s52, s52, 1
s_add_u32 s53, s53, s52
s_lshl_b32 s52, s{sJc}, 2
s_add_u32 s53, s53, s52
s_add_u32 s53, s53, {0 if A_ else 2}
s_lshl_b32 s53, s53, 3
s_add_u32 s67, s53, {FH}                  ; H flag
""")
        HS = 216 if A_ else 128
        for j in range(len(fts)):
            c = ACC2+16*j
            d = (236 + 4*j) if A_ else (128 + 4*j)
            for r in range(8): a(f"v_max_f32 v{c+r}, 0, v{c+r}")
            for r in range(8): a(f"v_mul_f32 v{c+8+r}, v{ST+2}, v{c+8+r}")
            for r in range(8): a(f"v_mul_f32 v{c+r}, v{c+r}, v{c+8+r}")
            for r in range(4): a(f"v_cvt_pk_bf16_f32 v{d+r}, v{c+2*r}, v{c+2*r+1}")
            vm.issue(f"buffer_store_dwordx4 {vr(d)}, v{vL16}, {S(sWS)}, s51 offen offset:{1024*j} sc1", "h")
        return vm

    vVo = vXo
    def att_first_loads(vm):
        R = RA
        a(f"""
v_and_b32 v{vT1}, 63, v0
v_lshrrev_b32 v{vT0}, 5, v{vT1}
v_lshlrev_b32 v{vVo}, 8, v{vT0}
v_and_b32 v{vT0}, 15, v{vT1}
v_lshl_add_u32 v{vVo}, v{vT0}, 4, v{vVo}
v_mov_b32 v{vT2}, 0x3f803f80
v_and_b32 v{vT0}, 27, v{vT1}
v_cmp_eq_u32 vcc, 16, v{vT0}
s_lshl_b32 s51, s{sHead}, 6
s_lshl_b32 s68, s{sWave}, 4
v_cndmask_b32 v{vT2}, 0, v{vT2}, vcc
s_add_u32 s68, s68, s51
s_lshl_b32 s68, s68, 10
s_add_u32 s69, s68, {VF}
s_add_u32 s68, s68, {KF}
s_lshl_b32 s70, s{sQb}, 3
s_add_u32 s70, s70, s51
s_lshl_b32 s70, s70, 10
s_add_u32 s70, s70, {QF}
s_mov_b32 s72, 0x0000ffff
s_mov_b32 s73, 0x0000ffff
""")
        for s_ in range(2):
            for r in range(8): a(f"v_mov_b32 v{R['KV'][s_]+4+r}, v{vT2}")
        vm.issue(f"buffer_load_dwordx4 {vr(R['KV'][0])}, v{vL16}, {S(sWS)}, s68 offen sc1", "k0")
        a(f"s_lshl_b32 s53, s{sWave}, 1")
        for q in range(8):
            a(f"s_add_u32 s51, s53, {q}\ns_and_b32 s51, s51, 7\ns_lshl_b32 s51, s51, 10\ns_add_u32 s51, s51, s70")
            vm.issue(f"buffer_load_dwordx4 {vr(R['Q']+4*q)}, v{vL16}, {S(sWS)}, s51 offen sc1", "q")
        a("s_mov_b64 exec, s[72:73]")
        vm.issue(f"buffer_load_dwordx4 {vr(R['KV'][0]+4)}, v{vVo}, {S(sWS)}, s69 offen sc1", "v0")
        vm.issue(f"buffer_load_dwordx4 {vr(R['KV'][0]+8)}, v{vVo}, {S(sWS)}, s69 offen offset:512 sc1", "v0")
        a("s_mov_b64 exec, -1\ns_add_u32 s68, s68, 1024")
        vm.issue(f"buffer_load_dwordx4 {vr(R['KV'][1])}, v{vL16}, {S(sWS)}, s68 offen sc1", "k1")

    a(f"s_cmp_ge_u32 s{sWave}, 4\ns_cbranch_scc1 L_gem")
    vm = gemm1("A")
    R = RA
    a("s_setprio 1")
    if PROF.get('dbgt'): a('s_memrealtime s[92:93]')
    stamp(a, 3)
    vm.wait("v0")
    a(mfma(R['S'][0], R['KV'][0], R['Q'], "0"))
    stamp(a, 4)
    a("s_nop 7\ns_nop 3")
    def kload(s_):
        return f"s_add_u32 s68, s68, 1024\nbuffer_load_dwordx4 {vr(R['KV'][s_])}, v{vL16}, {S(sWS)}, s68 offen sc1"
    def vload(s_):
        kv = R['KV'][s_]
        return f"""
s_add_u32 s69, s69, 1024
s_mov_b64 exec, s[72:73]
buffer_load_dwordx4 {vr(kv+4)}, v{vVo}, {S(sWS)}, s69 offen sc1
buffer_load_dwordx4 {vr(kv+8)}, v{vVo}, {S(sWS)}, s69 offen offset:512 sc1
s_mov_b64 exec, -1
"""
    def body(first):
        for n in range(16):
            pre = mid = post = None
            if n % 8 == 7:
                pre = "s_waitcnt vmcnt(2)"
                mid = kload((n//8) % 2)
                if first and n == 7:
                    mid = set_flag(a, 67, vTk, vZ) + mid
            if n % 8 == 0: post = vload(((n//8)+1) % 2)
            if n % 8 == 1 and not (first and n == 1):
                mid = f"s_waitcnt vmcnt({4 if (first and n == 9) else 3})"
            att_phase(a, n, first, pre, mid, post)
    body(True)
    a(f"s_mov_b32 s51, {natt}\n.p2align 6\nL_att:")
    body(False)
    a("s_sub_u32 s51, s51, 1\ns_cmp_lg_u32 s51, 0\ns_cbranch_scc1 L_att")
    a(f"v_cvt_pk_bf16_f32 v{R['P'][1]+7}, v{R['T']}, v{R['T']+1}")
    if PROF["on"]: a("s_memtime s[96:97]")
    if PROF.get('dbgt'): a('s_memrealtime s[94:95]')
    a("s_nop 0")
    a(mfma(OT[7], R['KV'][1]+4, R['P'][1]))
    a(mfma(OT[7], R['KV'][1]+8, R['P'][1]+4))
    EA = 8
    a(f"v_lshrrev_b32 v{vT0}, 2, v{vL16}")
    for d in range(1, 4):
        a(f"""
s_add_u32 s52, s{sWave}, {d}
s_and_b32 s52, s52, 3
s_mul_i32 s52, s52, 13824
s_add_u32 s52, s52, {(d-1)*4608}
v_add_u32 v{EA+2*d}, s52, v{vL16}
v_add_u32 v{EA+1+2*d}, s52, v{vT0}
""")
    a(f"""
s_mul_i32 s52, s{sWave}, 13824
v_add_u32 v{EA}, s52, v{vL16}
v_add_u32 v{EA+1}, s52, v{vT0}
""")
    for s_ in range(2, 8):
        o = OT[s_]
        d = s_ >> 1
        off = (s_ & 1)*2304
        a(f"ds_write_b128 v{EA+2*d}, {vr(o)} offset:{off}")
        a(f"ds_write_b128 v{EA+2*d}, {vr(o+4)} offset:{off+1024}")
        a(f"ds_write_b32 v{EA+1+2*d}, v{o+8} offset:{off+2048}")
    a(f"""
s_lshl_b32 s52, s{sQb}, 2
s_add_u32 s52, s52, s{sWave}
s_lshl_b32 s53, s52, 5
s_add_u32 s53, s53, s{sHead}
s_lshl_b32 s53, s53, 7
s_add_u32 s53, s53, {FO}             ; O flag
s_mul_i32 s52, s52, 288
s_add_u32 s52, s52, s{sHead}
s_add_u32 s52, s52, 112
s_lshl_b32 s52, s52, 10
s_add_u32 s52, s52, {ACT}
s_add_u32 s56, s52, {144*1024}
s_waitcnt vmcnt(0) lgkmcnt(0)
s_barrier
""")
    B = 128
    for t in range(2):
        for d in range(3):
            b = B + 36*t + 12*d
            off = d*4608 + t*2304
            a(f"ds_read_b128 {vr(b)}, v{EA} offset:{off}")
            a(f"ds_read_b128 {vr(b+4)}, v{EA} offset:{off+1024}")
            a(f"ds_read_b32 v{b+8}, v{EA+1} offset:{off+2048}")
            if t == 1 and d == 1: a("s_waitcnt lgkmcnt(9)")
    for t in range(2):
        o = OT[t]
        b = B + 36*t
        a(f"s_waitcnt lgkmcnt({9 if t == 0 else 0})")
        for r in range(9): a(f"v_add_f32 v{o+r}, v{o+r}, v{b+r}")
        for r in range(9): a(f"v_add_f32 v{b+12+r}, v{b+12+r}, v{b+24+r}")
        for r in (8,0,1,2,3,4,5,6,7): a(f"v_add_f32 v{o+r}, v{o+r}, v{b+12+r}")
        a(f"v_rcp_f32 v{o+9}, v{o+8}\ns_nop 0")
        for r in range(8): a(f"v_mul_f32 v{o+r}, v{o+r}, v{o+9}")
        for r in range(4): a(f"v_cvt_pk_bf16_f32 v{o+12+r}, v{o+2*r}, v{o+2*r+1}")
        a(f"buffer_store_dwordx4 {vr(o+12)}, v{vL16}, {S(sWS)}, s{52 if t == 0 else 56} offen sc1")
    a("s_waitcnt vmcnt(0)")
    a(set_flag(a, 53, vTk, vZ))
    if PROF["on"] and PROF.get("late"): a("s_waitcnt lgkmcnt(0)\ns_mov_b32 s82, s96\ns_memtime s[84:85]")
    a("s_branch L_fin")

    for st in range(8-D, 16):
        a(f"L_w7_{st}:")
        if st == bflag:
            a(f"""
s_lshl_b32 s51, s{sJc}, 4
s_add_u32 s51, s51, s{sRb}
s_lshl_b32 s51, s51, 7
s_add_u32 s51, s51, {FQ}
""")
            a(set_flag(a, 51, vTk, vZ))
        elif st == bpoll:
            a(f"""
s_waitcnt vmcnt(0)
s_lshr_b32 s66, s{sHead}, 1
s_lshl_b32 s66, s66, 11
s_add_u32 s66, s66, {FQ}
s_mov_b64 s[64:65], 0xffff
v_lshlrev_b32 v{vXo}, 3, v{vL16}
s_mov_b64 exec, s[64:65]
buffer_load_dwordx2 v[{vTk}:{vTk+1}], v{vXo}, {S(sWS)}, s66 offen sc1
s_mov_b64 exec, -1
""")
        elif st == bpoll+1:
            poll(a, 66, 64, vTk, vXo, "L_pollQ", issued=True)
        else:
            a("s_waitcnt vmcnt(0)")
        a(f"s_branch L_w7r_{st}")
    a("L_gem:")
    vm = gemm1("G")
    a("s_setprio 2")
    stamp(a, 3)
    sQ_ = sTt
    ACC = 192; WOF = 128+16; HR = 64; WF4 = 32; VD = 12; TD = 16; NR = 8
    WOFS = [144+8*i for i in range(6)] + [48, 56]
    vL8 = 14
    a(f"""
v_and_b32 v{vT1}, 63, v0
s_mul_i32 s55, s{sQ_}, 6144
s_add_u32 s55, s55, {WB}
v_lshrrev_b32 v{vT0}, 3, v{vT1}
v_lshlrev_b32 v{VD}, 10, v{vT0}
v_lshrrev_b32 v{vT2}, 2, v{vT1}
v_and_b32 v{vT2}, 4, v{vT2}
v_and_b32 v{vT0}, 7, v{vT1}
v_xor_b32 v{vT2}, v{vT2}, v{vT0}
v_lshl_add_u32 v{VD}, v{vT2}, 4, v{VD}
v_add_u32 v{VD+1}, {8*1024-1024}, v{VD}
v_lshlrev_b32 v{vL8}, 3, v{vT1}
v_lshlrev_b32 v{vL8+1}, 7, v{vT1}
v_lshrrev_b32 v{vT0}, 5, v{vT1}              ; h
v_bfe_u32 v{vT2}, v{vT1}, 2, 2               ; r
v_lshl_add_u32 v{vT2}, v{vT0}, 2, v{vT2}     ; 4h + r
v_lshlrev_b32 v{vT2}, 7, v{vT2}
v_bfe_u32 v{vT0}, v{vT1}, 4, 1
v_lshl_add_u32 v{vT2}, v{vT0}, 5, v{vT2}
v_and_b32 v{vT0}, 3, v{vT1}
v_lshl_add_u32 v{vT2}, v{vT0}, 3, v{vT2}
v_add_u32 v{vT2}, s55, v{vT2}
v_bfe_u32 v{vT0}, v{vT1}, 3, 1
v_lshl_add_u32 v{TD}, v{vT0}, 6, v{vT2}
v_xor_b32 v{vT0}, 1, v{vT0}
v_lshl_add_u32 v{TD+1}, v{vT0}, 6, v{vT2}
v_add_u32 v{TD+2}, {2*24576}, v{TD}
v_add_u32 v{TD+3}, {2*24576}, v{TD+1}
s_lshl_b32 s60, s{sQb}, 7
s_lshl_b32 s61, s{sQ_}, 17
s_add_u32 s61, s61, s60
s_mul_i32 s62, s{sQ_}, {28*16*1024}
s_add_u32 s62, s62, s60
s_mul_i32 s63, s{sHead}, 288
s_lshl_b32 s63, s63, 10
s_add_u32 s63, s63, {ACT}
s_mul_i32 s64, s{sQ_}, {28*1024}
s_add_u32 s64, s64, s63                      ; H soffset (t=0)
s_add_u32 s65, s64, {144*1024}
s_lshl_b32 s58, s{sQ_}, 13
s_add_u32 s58, s58, s63
s_add_u32 s58, s58, {112*1024}               ; O soffset (t=0)
s_add_u32 s59, s58, {144*1024}
s_lshl_b32 s68, s{sHead}, 9
s_add_u32 s68, s68, {FH}
s_lshl_b32 s69, s{sHead}, 12
s_add_u32 s69, s69, {FO}
s_lshl_b32 s56, s{sQ_}, 4
s_mov_b64 s[70:71], 0xffff
s_lshl_b64 s[70:71], s[70:71], s56
s_lshl_b32 s56, s{sQ_}, 3
s_mov_b64 s[72:73], 0xff
s_lshl_b64 s[72:73], s[72:73], s56
s_waitcnt vmcnt(0)
""")
    a(set_flag(a, 67, vTk, vZ))
    def w_dma(slot, srd_, soff):
        a(f"""
s_add_u32 m0, s55, {(slot>>1)*24576+(slot&1)*2048}
s_nop 0
buffer_load_dwordx4 v{VD}, {S(srd_)}, s{soff} offen lds
buffer_load_dwordx4 v{VD+1}, {S(srd_)}, s{soff} offen offset:1024 lds
s_add_u32 s{soff}, s{soff}, 16384
""")
    def w_reads(slot, dst):
        m = slot >> 1
        for i in range(2):
            for e in range(2):
                a(f"ds_read_b64_tr_b16 {vr(dst+4*i+2*e,2)}, v{TD+i+(2 if m>=2 else 0)} offset:{(m%2)*24576+(slot&1)*2048+e*1024}")
    for s_ in range(8): w_dma(s_, sWO, 61)
    for s_ in range(8):
        a(f"s_waitcnt vmcnt({14-2*s_})")
        w_reads(s_, WOFS[s_])
        if s_ % 2 == 1: a("s_waitcnt lgkmcnt(0)")
    for s_ in range(NR): w_dma(s_, sWD, 62)
    poll(a, 68, 70, 10, vL8, "L_pollH")
    if not PROF.get("late"): stamp(a, 4)
    a(f"s_setprio {t4prio}")
    def h_loads(k):
        b = HR + 8*(k % 8)
        if k % 4 == 0 and k > 0: a("s_add_u32 s64, s64, 4096\ns_add_u32 s65, s65, 4096")
        a(f"buffer_load_dwordx4 {vr(b)}, v{vL16}, {S(sWS)}, s64 offen offset:{1024*(k%4)} sc1")
        a(f"buffer_load_dwordx4 {vr(b+4)}, v{vL16}, {S(sWS)}, s65 offen offset:{1024*(k%4)} sc1")
    for k in range(8): h_loads(k)
    if PROF["on"]: a("s_waitcnt lgkmcnt(0)")
    w_reads(0, WF4)
    NK = 28
    def issued_after_H(k, at):
        n = 0
        if k < 8:
            n += 2*(7-k)
            n += 4*sum(1 for s in range(at) if s+8 < NK)
        else:
            n += 4*sum(1 for s in range(k-8+1, at) if s+8 < NK)
        return n
    for k in range(NK):
        if k == NK - p2:
            if PROF.get("late"): stamp(a, 3)
            a("s_barrier\ns_setprio 2")
        w = WF4 + 8*(k % 2)
        h = HR + 8*(k % 8)
        if k+1 < NK and k+1 >= 8: n = issued_after_H(k+1, k) + 2
        else: n = issued_after_H(k, k)
        a(f"s_waitcnt vmcnt({n}) lgkmcnt(0)")
        c = "0" if k == 0 else None
        a(mfma(ACC+0,  w,   h,   c))
        if k+1 < NK: w_reads((k+1) % NR, WF4 + 8*((k+1) % 2))
        a(mfma(ACC+16, w+4, h,   c))
        if k+8 < NK: w_dma(k % NR, sWD, 62)
        a(mfma(ACC+32, w,   h+4, c))
        a(mfma(ACC+48, w+4, h+4, c))
        if k+8 < NK: h_loads(k+8)
    if p2 == 0: a("s_barrier\ns_setprio 2")
    if PROF.get("late"): stamp(a, 4)
    poll(a, 69, 72, 10, vL8+1, "L_pollO")
    for k in range(8):
        b = HR + 8*k
        if k == 4: a("s_add_u32 s58, s58, 4096\ns_add_u32 s59, s59, 4096")
        a(f"buffer_load_dwordx4 {vr(b)}, v{vL16}, {S(sWS)}, s58 offen offset:{1024*(k%4)} sc1")
        a(f"buffer_load_dwordx4 {vr(b+4)}, v{vL16}, {S(sWS)}, s59 offen offset:{1024*(k%4)} sc1")
    if PROF["on"] and PROF.get("late"): a("s_memtime s[82:83]")
    for k in range(8):
        w = WOFS[k]; h = HR + 8*k
        a(f"s_waitcnt vmcnt({14-2*k})")
        a(mfma(ACC+0,  w,   h))
        a(mfma(ACC+16, w+4, h))
        a(mfma(ACC+32, w,   h+4))
        a(mfma(ACC+48, w+4, h+4))
    if PROF["on"] and PROF.get("late"): a("s_memtime s[84:85]")
    a(f"""
v_add_u32 v{vT0}, s55, v{vL16}
v_add_u32 v{vT1}, {2*24576}, v{vT0}
s_nop 7
""")
    for tile in range(4):
        for q in range(4):
            a(f"ds_write_b128 v{vT0 if tile < 2 else vT1}, {vr(ACC+16*tile+4*q)} offset:{(tile%2)*24576+q*1088}")
    a("L_fin:")
    E = 64; XRS = 60; FR = 128
    a(f"""
v_lshrrev_b32 v{vT0}, 3, v0                  ; token
v_and_b32 v{vT1}, 7, v0                      ; oct
v_lshlrev_b32 v10, 10, v{vT0}
v_lshl_add_u32 v10, v{vT1}, 4, v10
s_lshl_b32 s56, s{sHead}, 16
s_lshl_b32 s57, s{sQb}, 7
s_add_u32 s56, s56, s57
buffer_load_dwordx4 {vr(XRS)}, v10, {S(sX)}, s56 offen
v_lshrrev_b32 v{vT2}, 5, v{vT0}              ; t
v_lshrrev_b32 v11, 2, v{vT1}                 ; i
v_lshl_add_u32 v{vT2}, v{vT2}, 1, v11        ; tile
v_mul_u32_u24 v{vT2}, 24576, v{vT2}
v_and_b32 v11, 3, v{vT1}
v_mul_u32_u24 v11, 1088, v11
v_add_u32 v{vT2}, v{vT2}, v11
v_and_b32 v{vT0}, 31, v{vT0}
v_lshl_add_u32 v{vT2}, v{vT0}, 4, v{vT2}
v_add_u32 v{vT2}, {WB}, v{vT2}
s_waitcnt lgkmcnt(0)
s_barrier
""")
    for w in range(4):
        a(f"ds_read_b128 {vr(FR+8*w)}, v{vT2} offset:{w*6144}")
        a(f"ds_read_b128 {vr(FR+8*w+4)}, v{vT2} offset:{w*6144+512}")
    a("s_waitcnt vmcnt(0)")
    for r in range(4):
        a(f"v_lshlrev_b32 v{E+2*r}, 16, v{XRS+r}")
        a(f"v_and_b32 v{E+2*r+1}, 0xffff0000, v{XRS+r}")
    for w in range(4):
        a(f"s_waitcnt lgkmcnt({6-2*w})")
        for r in range(8):
            a(f"v_add_f32 v{E+r}, v{E+r}, v{FR+8*w+r}")
    for r in range(4): a(f"v_cvt_pk_bf16_f32 v{E+8+r}, v{E+2*r}, v{E+2*r+1}")
    a(f"buffer_store_dwordx4 {vr(E+8)}, v10, {S(sOUT)}, s56 offen")
    stamp_end(a, 0)
    if PROF.get('dbgt'):
        a(f"""
s_cmp_lg_u32 s{sWave}, 0
s_cbranch_scc1 L_exit
s_waitcnt vmcnt(0)
s_memrealtime s[96:97]
s_waitcnt lgkmcnt(0)
s_not_b32 s86, s90
s_mov_b64 exec, 1
""")
        for idx, sg in ((4, 86), (5, 90), (6, 88), (7, 92), (8, 94), (9, 96)):
            a(f"v_mov_b32 v10, s{sg}\nbuffer_atomic_umax v10, v{vZ}, {S(sDBG)}, 0 offen offset:{4*idx}\ns_waitcnt vmcnt(0)")
    a("L_exit:\ns_endpgm")

def build(out, **opt):
    a = A()
    PROF['on'] = bool(opt.pop('prof', 0)); PROF['late'] = bool(opt.pop('late', 0)); PROF['dbgt'] = bool(opt.pop('dbgt', 0))
    hdr = open("cdna_kernels/" + NAME + ".s.ref").read().split("; Override launch")[0]
    hdr += f"; @launch grid=(256,1,1) block=(512,1,1) lds={LDS_BYTES}\n"
    hdr += '.amdgcn_target "amdgcn-amd-amdhsa--gfx950"\n.text\n'
    gen(a, NAME + "_kernel", **opt)
    txt = hdr + a.text() + '.section .rodata,"a"\n' + descriptor(NAME + "_kernel", 256)
    open(out, "w").write(txt)

if __name__ == "__main__":
    out = sys.argv[1] if len(sys.argv) > 1 else "cdna_kernels/" + NAME + ".s"
    opt = dict((kv.split("=")[0], int(kv.split("=")[1])) for kv in sys.argv[2:])
    build(out, **opt)
```
